```python
import torch

def _softmax(x, axis=-1):
    return torch.softmax(x, dim=axis)

def _gelu(x):
    return torch.nn.functional.gelu(x, approximate='tanh')

def _silu(x):
    return torch.nn.functional.silu(x)

def _sigmoid(x):
    return torch.sigmoid(x)

def _layernorm(x, axis=-1, eps=1e-05):
    m = x.mean(dim=axis, keepdim=True)
    v = x.var(dim=axis, keepdim=True, unbiased=False)
    return (x - m) / torch.sqrt(v + eps)

def _scatter_add(tgt, idx, src, axis=0):
    return tgt.clone().index_add_(axis, idx, src)

def _segment_sum(src, seg, n):
    out = torch.zeros((n,) + src.shape[1:], dtype=src.dtype)
    return out.index_add_(0, seg, src)

def _pad(x, pw):
    flat = tuple((v for pair in reversed(pw) for v in pair))
    return torch.nn.functional.pad(x, flat)
kernel_name = 'gated_mix__memory_aug_recurrent_mem_tr__dense_activation_gelu__prompt'

def setup_inputs():

    _w = lambda a: (lambda t: t.to(torch.bfloat16) if t.is_floating_point() else t)(torch.as_tensor(a))

    def _A_setup():
        B, S, Dm = (1, 2048, 576)
        H, Dh = (32, 128)
        M, seg = (8, 32)
        seg = min(seg, S)
        S = S // seg * seg
        return {'x': _w((lambda *s: torch.randn(*s, dtype=torch.bfloat16) * 0.05)(B, S, Dm)), 'mem0': _w((lambda *s: torch.randn(*s, dtype=torch.bfloat16) * 0.4)(B, M, Dm)), 'Wq': _w((lambda *s: torch.randn(*s, dtype=torch.bfloat16) * 6.4)(Dm, H, Dh) * Dm ** (-0.5)), 'Wk': _w((lambda *s: torch.randn(*s, dtype=torch.bfloat16) * 6.4)(Dm, H, Dh) * Dm ** (-0.5)), 'Wv': _w((lambda *s: torch.randn(*s, dtype=torch.bfloat16) * 0.4)(Dm, H, Dh) * Dm ** (-0.5)), 'Wo': _w((lambda *s: torch.randn(*s, dtype=torch.bfloat16) * 0.4)(H, Dh, Dm) * (H * Dh) ** (-0.5)), 'seg_len': seg}
    _A_in = _A_setup()

    def _B_setup():
        B, S, D, F = (1, 2048, 576, 4608)
        return {'x': _w((lambda *s: torch.randn(*s, dtype=torch.bfloat16) * 0.05)(B, S, D)), 'w1': _w((lambda *s: torch.randn(*s, dtype=torch.bfloat16) * 3.2)(D, F) * D ** (-0.5)), 'b1': _w((lambda *s: torch.randn(*s, dtype=torch.bfloat16) * 3.2)(F) * 0.01), 'w2': _w((lambda *s: torch.randn(*s, dtype=torch.bfloat16) * 0.2)(F, D) * F ** (-0.5)), 'b2': _w((lambda *s: torch.randn(*s, dtype=torch.bfloat16) * 0.4)(D) * 0.01)}
    _B_in = _B_setup()
    return {'A_x': _A_in['x'], 'A_mem0': _A_in['mem0'], 'A_Wq': _A_in['Wq'], 'A_Wk': _A_in['Wk'], 'A_Wv': _A_in['Wv'], 'A_Wo': _A_in['Wo'], 'A_seg_len': _A_in['seg_len'], 'B_x': _B_in['x'], 'B_w1': _B_in['w1'], 'B_b1': _B_in['b1'], 'B_w2': _B_in['w2'], 'B_b2': _B_in['b2'], 'gate_w': _w((lambda *s: torch.randn(*s, dtype=torch.bfloat16) * 0.05)(576) * 16.0)}

def reference(A_x, A_mem0, A_Wq, A_Wk, A_Wv, A_Wo, A_seg_len, B_x, B_w1, B_b1, B_w2, B_b2, gate_w):

    def _A_ref(x, mem0, Wq, Wk, Wv, Wo, seg_len):
        B, S, Dm = x.shape
        H, Dh = (Wq.shape[1], Wq.shape[2])
        M = mem0.shape[1]
        scale = Dh ** (-0.5)
        n_seg = S // seg_len
        L = M + seg_len
        idx = torch.arange(L)
        mask = (idx[:, None] < M) | (idx[:, None] >= idx[None, :])
        mem = mem0
        outs = []
        for s in range(n_seg):
            xs = x[:, s * seg_len:(s + 1) * seg_len, :].clone()
            h = torch.concatenate([mem, xs], axis=1)
            q = torch.einsum('btd,dhe->bhte', h, Wq)
            k = torch.einsum('btd,dhe->bhte', h, Wk)
            v = torch.einsum('btd,dhe->bhte', h, Wv)
            scores = torch.einsum('bhqe,bhke->bhqk', q, k) * scale
            scores = torch.where(mask[None, None], scores, -1000000000.0)
            p = _softmax(scores, axis=-1)
            o = torch.einsum('bhqk,bhke->bhqe', p, v)
            o = torch.einsum('bhte,hed->btd', o, Wo)
            mem = o[:, :M, :].clone()
            outs.append(o[:, M:, :])
        return torch.concatenate(outs, axis=1)

    def _B_ref(x, w1, b1, w2, b2):
        h = torch.einsum('bsd,df->bsf', x, w1) + b1
        h = _gelu(h)
        return torch.einsum('bsf,fd->bsd', h, w2) + b2
    x = A_x
    g = _sigmoid((x * gate_w).sum(-1, keepdims=True))
    a = _A_ref(x, A_mem0, A_Wq, A_Wk, A_Wv, A_Wo, A_seg_len)
    b = _B_ref(x, B_w1, B_b1, B_w2, B_b2)
    return g * a + (1 - g) * b
```

```python
class Asm:
    def __init__(self):
        self.lines = []
        self.ds_n = 0
        self.vm_n = 0
        self.uid = 0
    def __call__(self, s):
        self.lines.append("    " + s)
    def c(self, s):
        self.lines.append("    ; " + s)
    def label(self, s):
        self.lines.append(s + ":")
    def newlabel(self, p="L"):
        self.uid += 1
        return "%s_%d" % (p, self.uid)
    def ds(self, s):
        self(s)
        self.ds_n += 1
        return self.ds_n
    def vm(self, s):
        self(s)
        self.vm_n += 1
        return self.vm_n
    def wait_ds(self, ticket):
        n = self.ds_n - ticket
        assert n >= 0
        self("s_waitcnt lgkmcnt(%d)" % min(n, 15))
    def wait_vm(self, ticket):
        n = self.vm_n - ticket
        assert n >= 0
        self("s_waitcnt vmcnt(%d)" % min(n, 63))
    def text(self):
        return "\n".join(self.lines) + "\n"

def v(a, n=1):
    return "v%d" % a if n == 1 else "v[%d:%d]" % (a, a + n - 1)
def a_(a, n=1):
    return "a%d" % a if n == 1 else "a[%d:%d]" % (a, a + n - 1)
def s(a, n=1):
    return "s%d" % a if n == 1 else "s[%d:%d]" % (a, a + n - 1)
def reg(r, n=1):
    return v(r, n) if r < 256 else a_(r - 256, n)
```

```python
from asmlib import *

WS_BYTES = 0x10000000
WS_IN1 = 0x100000
IN1_SLOT = 72 * 4096
WS_IN2 = 0x200000
IN2_SLOT = 16384
WS_PROF = 0x300000
WS_KV = 0x1000000
WS_Q = 0x3000000
WS_KVM = 0x4000000
OOB = 0x7ff00000

X0 = 65536
L_KX = X0
L_VX = X0 + 8192
L_MEM = X0 + 16384
L_O = L_MEM
L_QK = L_MEM + 9216
L_SEL = L_QK + 4096
L_ONE = L_SEL + 1024
L_DUMMY = L_ONE + 1024
assert L_DUMMY + 256 <= X0 + 32768

SPIN_MAX = 1 << 20

def gen_chain(A, prof=False, nsteps=64, st_flags="", tot=True, d1=0, d2=0, X=()):
    WS, WQK, WV, WO, DBG, M0S = 4, 8, 12, 16, 20, 24
    sH, sW, sStep, sT, sT2, sSpin = 28, 29, 30, 31, 32, 33
    sIn1R, sIn2W, sIn2R, sIn2Z, sKV, sPub, sUnit, sIn1Z, sC = 34, 35, 36, 37, 38, 39, 40, 41, 42
    sWarm, sPubV, sH2, sM0 = 53, 63, 70, 71
    sSt = 48
    sAo = 54
    sOo = 64
    sW2k = 68
    sUo = 69
    sPT = 72
    vIdx, vLX, vLW, vLW2, vEw, vQKr, vOrH, vP1, vP2, vA, vVP = range(11)
    VA1 = 12
    AR = [16, 20, 24]
    T = [28, 32, 36, 40]
    TB = 44
    VA0 = 60
    VA = [VA0, VA1]
    nstamp = [0]
    ncut = [0]
    def stamp():
        ncut[0] += 1
        if ("cut%d" % (ncut[0] - 1)) in X:
            A("s_add_u32 %s, %s, 1" % (s(sStep), s(sStep)))
            A("s_mov_b32 m0, %s" % s(sM0))
            A("s_nop 7")
            for gi in range(3):
                A("v_add_u32 %s, %s, %s" % (v([vA, 10, 11][gi]), s(sAo + 3 * gi), v(vLX)))
            A("v_lshlrev_b32 %s, 2, %s" % (v(VA0), v(vLX)))
            A("s_waitcnt lgkmcnt(0)")
            A("s_cmp_lt_u32 %s, 63" % s(sStep))
            A("s_cbranch_scc1 Lstep")
            A("s_branch Lfin")
        if prof:
            A("s_memtime %s" % s(sPT + 2 * nstamp[0], 2))
            nstamp[0] += 1

    A.c("================= chain role =================")
    if tot:
        A("s_memtime s[98:99]")
    A("s_load_dwordx2 s[24:25], s[0:1], 8")
    A("s_load_dwordx4 s[44:47], s[0:1], 16")
    A("s_load_dwordx2 s[12:13], s[0:1], 32")
    A("s_load_dwordx2 s[16:17], s[0:1], 40")
    vLane = 27
    A("v_lshrrev_b32 v1, 6, v0")
    A("s_nop 0")
    A("v_readfirstlane_b32 %s, v1" % s(sW))
    A("v_and_b32 %s, 63, v0" % v(vLane))
    A("s_waitcnt lgkmcnt(0)")
    A("s_cmp_lt_u32 %s, 2" % s(sW))
    A("s_cselect_b32 s8, s44, s46")
    A("s_cselect_b32 s9, s45, s47")
    for b, n in ((WQK, 576 * 8192), (WV, 576 * 8192), (WO, 4096 * 1152), (M0S, 9216)):
        A("s_mov_b32 %s, %d" % (s(b + 2), n))
        A("s_mov_b32 %s, 0x00020000" % s(b + 3))
    L = v(vLane)
    t0, t1, t2, t3 = v(16), v(17), v(18), v(19)
    A("v_and_b32 %s, 15, %s" % (t0, L))
    A("v_lshrrev_b32 %s, 4, %s" % (t1, L))
    A("v_and_b32 %s, 8, %s" % (t2, L))
    A("v_mov_b32 %s, 0x4444" % v(vIdx))
    A("v_mov_b32 %s, 0xeeee" % t3)
    A("v_cmp_ne_u32 vcc, 0, %s" % t2)
    A("s_nop 1")
    A("v_cndmask_b32 %s, %s, %s, vcc" % (v(vIdx), v(vIdx), t3))
    A("v_lshlrev_b32 %s, 4, %s" % (t2, L))
    A("v_add_u32 %s, %d, %s" % (v(vLX), X0, t2))
    A("s_lshl_b32 %s, %s, 12" % (s(sT), s(sW)))
    A("v_add_u32 %s, %s, %s" % (v(vLW), s(sT), t2))
    A("v_add_u32 %s, 98304, %s" % (v(vLW2), v(vLW)))
    A("v_bfe_u32 %s, %s, 3, 1" % (t3, L))
    A("v_lshl_add_u32 %s, %s, 10, %s" % (v(vOrH), t3, v(vLX)))
    A("v_lshrrev_b32 %s, 1, %s" % (t2, t1))
    A("v_lshl_add_u32 %s, %s, 4, %s" % (t2, t2, t0))
    A("v_lshlrev_b32 %s, 4, %s" % (t2, t2))
    A("v_and_b32 %s, 1, %s" % (t3, t1))
    A("v_lshl_add_u32 %s, %s, 3, %s" % (t2, t3, t2))
    A("s_lshl_b32 %s, %s, 10" % (s(sT), s(sW)))
    A("s_add_u32 %s, %s, %d" % (s(sT), s(sT), X0))
    A("v_add_u32 %s, %s, %s" % (v(vEw), s(sT), t2))
    A("v_lshrrev_b32 %s, 2, %s" % (t2, t0))
    A("v_lshl_add_u32 %s, %s, 3, %s" % (t2, t1, t2))
    A("v_lshlrev_b32 %s, 4, %s" % (t2, t2))
    A("v_and_b32 %s, 1, %s" % (t3, L))
    A("v_lshl_add_u32 %s, %s, 3, %s" % (t2, t3, t2))
    A("v_add_u32 %s, %d, %s" % (v(vQKr), L_QK, t2))
    A("v_bfe_u32 %s, %s, 3, 1" % (t3, L))
    A("v_lshrrev_b32 %s, 1, %s" % (t2, t1))
    A("v_lshlrev_b32 %s, 1, %s" % (t2, t2))
    A("v_add_u32 %s, %s, %s" % (t2, t2, t3))
    A("v_lshlrev_b32 %s, 12, %s" % (t2, t2))
    A("v_and_b32 %s, 7, %s" % (t3, L))
    A("v_lshl_add_u32 %s, %s, 4, %s" % (t2, t3, t2))
    A("v_and_b32 %s, 1, %s" % (t3, t1))
    A("v_lshl_add_u32 %s, %s, 3, %s" % (t2, t3, t2))
    A("s_mul_i32 %s, %s, %d" % (s(sT), s(sW), 18 * 4096))
    A("s_lshl_b32 %s, %s, 7" % (s(sT2), s(sH)))
    A("s_add_u32 %s, %s, %s" % (s(sT), s(sT), s(sT2)))
    A("v_add_u32 %s, %s, %s" % (v(vP1), s(sT), t2))
    A("s_lshl_b32 %s, %s, 5" % (s(sUnit), s(sW)))
    A("s_add_u32 %s, %s, %s" % (s(sUnit), s(sUnit), s(sH)))
    A("v_lshlrev_b32 %s, 4, %s" % (t2, t0))
    A("v_and_b32 %s, 1, %s" % (t3, t1))
    A("v_lshl_add_u32 %s, %s, 3, %s" % (t2, t3, t2))
    A("v_lshrrev_b32 %s, 1, %s" % (t3, t1))
    A("v_lshl_add_u32 %s, %s, 2, %s" % (t2, t3, t2))
    A("s_lshl_b32 %s, %s, 7" % (s(sT), s(sUnit)))
    A("s_lshl_b32 %s, %s, 12" % (s(sUo), s(sUnit)))
    A("s_sub_u32 %s, %s, %d" % (s(sUo), s(sUo), X0))
    A("s_cmp_lt_u32 %s, 72" % s(sUnit))
    A("s_cselect_b32 %s, %s, %d" % (s(sT), s(sT), OOB))
    A("s_cselect_b32 %s, %s, %d" % (s(sUo), s(sUo), OOB))
    A("v_add_u32 %s, %s, %s" % (t2, s(sT), t2))
    A("v_mov_b32 %s, %d" % (t3, OOB))
    A("v_cmp_gt_u32 vcc, 8, %s" % t0)
    A("s_nop 1")
    A("v_cndmask_b32 %s, %s, %s, vcc" % (v(vP2), t3, t2))
    A("s_mov_b32 %s, 0x3e0293ee" % s(sC))
    A("s_lshl_b32 %s, %s, 11" % (s(sW2k), s(sW)))
    for j in range(9):
        A("s_add_u32 %s, %s, %d" % (s(sT), s(sW), j // 3))
        A("s_sub_u32 %s, %s, 3" % (s(sT2), s(sT)))
        A("s_cmp_ge_u32 %s, 3" % s(sT))
        A("s_cselect_b32 %s, %s, %s" % (s(sT), s(sT2), s(sT)))
        A("s_mul_i32 %s, %s, 3072" % (s(sT), s(sT)))
        A("s_add_u32 %s, %s, %d" % (s(sAo + j), s(sT), (j % 3) * 1024))
    for j in range(4):
        A("s_add_u32 %s, %s, %d" % (s(sT), s(sW), j))
        A("s_and_b32 %s, %s, 3" % (s(sT), s(sT)))
        A("s_lshl_b32 %s, %s, 10" % (s(sOo + j), s(sT)))

    for r in range(4):
        A("v_mov_b32 %s, -1" % v(20 + r))
    for slot in range(2):
        A("s_add_u32 %s, %s, %d" % (s(sT), s(sUo), WS_IN1 + slot * IN1_SLOT))
        for j in range(4):
            A("buffer_store_dwordx4 v[20:23], %s, %s, %s offen offset:%d %s" % (v(vLX), s(WS, 4), s(sT), j * 1024, st_flags))
    for slot in range(4):
        A("s_mov_b32 %s, %d" % (s(sT), WS_IN2 + slot * IN2_SLOT))
        A("buffer_store_dword v20, %s, %s, %s offen %s" % (v(vP2), s(WS, 4), s(sT), st_flags))
    A("s_waitcnt vmcnt(0)")
    A("s_barrier")
    lab_na = A.newlabel("Lnoarr")
    A("s_cmp_lg_u32 %s, 0" % s(sW))
    A("s_cbranch_scc1 %s" % lab_na)
    A("v_mov_b32 v20, 1")
    A("v_mov_b32 v21, 64")
    A("s_mov_b64 exec, 1")
    A("buffer_atomic_add v20, v21, %s, 0 offen" % s(DBG, 4))
    A("s_mov_b64 exec, -1")
    A.label(lab_na)

    vOffQ, vOffO, vOffS, vTrH, vTrP, vTrS, vTa = 20, 21, 22, 23, 24, 25, 26
    TMP = 32
    A("v_lshrrev_b32 %s, 2, %s" % (t2, L))
    A("v_and_b32 %s, 3, %s" % (t3, L))
    A("v_lshlrev_b32 %s, 13, %s" % (v(vOffQ), t2))
    A("v_lshl_add_u32 %s, %s, 4, %s" % (v(vOffQ), t3, v(vOffQ)))
    A("v_mul_u32_u24 %s, 1152, %s" % (v(vOffO), t2))
    A("v_lshl_add_u32 %s, %s, 4, %s" % (v(vOffO), t3, v(vOffO)))
    A("v_lshrrev_b32 %s, 1, %s" % (t2, L))
    A("v_mul_u32_u24 %s, 1152, %s" % (v(vOffS), t2))
    A("v_and_b32 %s, 1, %s" % (t2, L))
    A("v_lshl_add_u32 %s, %s, 4, %s" % (v(vOffS), t2, v(vOffS)))
    A("s_lshl_b32 %s, %s, 12" % (s(sT), s(sW)))
    A("v_lshlrev_b32 %s, 3, %s" % (t3, t3))
    A("v_add_u32 %s, %s, %s" % (t3, s(sT), t3))
    A("v_lshrrev_b32 %s, 1, %s" % (t2, t1))
    A("v_lshlrev_b32 %s, 4, %s" % (v(vTa), t2))
    A("v_and_b32 %s, 1, %s" % (t2, t1))
    A("v_lshl_add_u32 %s, %s, 2, %s" % (v(vTa), t2, v(vTa)))
    A("v_bfe_u32 %s, %s, 2, 1" % (t2, L))
    A("v_add_u32 %s, %s, %s" % (v(vTa), t2, v(vTa)))
    A("v_bfe_u32 %s, %s, 3, 1" % (t2, L))
    A("v_lshl_add_u32 %s, %s, 3, %s" % (v(vTa), t2, v(vTa)))
    A("v_lshl_add_u32 %s, %s, 6, %s" % (v(vTrH), v(vTa), t3))
    A("v_and_b32 %s, 1, %s" % (t2, t1))
    A("v_lshlrev_b32 %s, 4, %s" % (v(vTa), t2))
    A("v_lshrrev_b32 %s, 1, %s" % (t2, t1))
    A("v_lshl_add_u32 %s, %s, 2, %s" % (v(vTa), t2, v(vTa)))
    A("v_bfe_u32 %s, %s, 2, 1" % (t2, L))
    A("v_add_u32 %s, %s, %s" % (v(vTa), t2, v(vTa)))
    A("v_bfe_u32 %s, %s, 3, 1" % (t2, L))
    A("v_lshl_add_u32 %s, %s, 6, %s" % (v(vTrP), v(vTa), t3))
    A("v_lshl_add_u32 %s, %s, 5, %s" % (v(vTrP), t2, v(vTrP)))
    A("v_lshl_add_u32 %s, %s, 5, %s" % (v(vTa), t2, v(vTa)))
    A("v_lshl_add_u32 %s, %s, 5, %s" % (v(vTrS), v(vTa), t3))
    sQc, sVc, sOc, sLw = 44, 45, 46, 47
    A("s_lshl_b32 %s, %s, 8" % (s(sQc), s(sH)))
    A("s_lshl_b32 %s, %s, 6" % (s(sT), s(sW)))
    A("s_add_u32 %s, %s, %s" % (s(sVc), s(sQc), s(sT)))
    A("s_and_b32 %s, %s, 1" % (s(sT), s(sW)))
    A("s_lshl_b32 %s, %s, 7" % (s(sT), s(sT)))
    A("s_add_u32 %s, %s, %s" % (s(sQc), s(sQc), s(sT)))
    A("s_mul_i32 %s, %s, 147456" % (s(sOc), s(sH)))
    A("s_mul_i32 %s, %s, 288" % (s(sT), s(sW)))
    A("s_add_u32 %s, %s, %s" % (s(sOc), s(sOc), s(sT)))
    A("s_lshl_b32 %s, %s, 12" % (s(sLw), s(sW)))

    res_qk = [0, 2, 4, 6, 8]
    res_wo = [(1, 0), (2, 1), (3, 1)]
    dfr = []
    for j in range(9):
        dfr.append(("qk", j, 0))
        if j not in res_qk:
            dfr.append(("qk", j, 1))
    for kk in range(9):
        dfr.append(("v", kk))
    for p in range(4):
        for kp in range(2):
            if (p, kp) not in res_wo:
                dfr.append(("wo", p, kp))
    dfr.append(("ws",))
    assert len(dfr) == 28
    regof = {}
    for i, d in enumerate(dfr):
        regof[d] = 256 + 16 * i if i < 16 else 64 + 16 * (i - 16)
    resid = [("qk", j, 1) for j in res_qk] + [("wo", p, kp) for p, kp in res_wo]
    res_slots = [8, 9, 0, 1, 2, 3, 6, 7]
    slotof = {}
    for i, d in enumerate(dfr):
        slotof[d] = i % 10
    for d, sl in zip(resid, res_slots):
        slotof[d] = sl
    alld = dfr + resid
    def lds_frag_addr(d, q):
        sl = slotof[d]
        if sl < 4:
            return v(vLW), sl * 16384 + q * 1024
        return v(vLW2), (sl - 6) * 16384 + q * 1024
    def rdres(d, q):
        ar, off = lds_frag_addr(d, q)
        return A.ds("ds_read_b128 %s, %s offset:%d" % (v(TB + 4 * q, 4), ar, off))

    tick = {}
    def issue_dma(d):
        sl = slotof[d]
        for i in range(4):
            if d[0] == "qk":
                A("s_lshl_b32 %s, %s, 9" % (s(sT), s(sAo + d[1])))
                A("s_add_u32 %s, %s, %s" % (s(sT), s(sT), s(sQc)))
                A("s_add_u32 %s, %s, %d" % (s(sT), s(sT), 16 * i * 8192 + d[2] * 64))
                srd, vo = WQK, vOffQ
            elif d[0] == "v":
                A("s_add_u32 %s, %s, %d" % (s(sT), s(sVc), (64 * d[1] + 16 * i) * 8192))
                srd, vo = WV, vOffQ
            elif d[0] == "wo":
                A("s_mul_i32 %s, %s, 36" % (s(sT), s(sOo + 2 * d[2] + i // 2)))
                A("s_add_u32 %s, %s, %s" % (s(sT), s(sT), s(sOc)))
                A("s_add_u32 %s, %s, %d" % (s(sT), s(sT), 16 * (i % 2) * 1152 + d[1] * 64))
                srd, vo = WO, vOffO
            else:
                A("s_add_u32 %s, %s, %d" % (s(sT), s(sOc), (32 * i) * 1152 + 256))
                srd, vo = WO, vOffS
            A("s_add_u32 m0, %s, %d" % (s(sLw), sl * 16384 + i * 1024))
            A("s_nop 0")
            tick[d] = A.vm("buffer_load_dwordx4 %s, %s, %s offen lds" % (v(vo), s(srd, 4), s(sT)))
    pending = list(alld)
    busy = {}
    def try_issue():
        while pending and slotof[pending[0]] not in busy:
            d = pending.pop(0)
            busy[slotof[d]] = d
            issue_dma(d)
    try_issue()
    for d in alld:
        A.wait_vm(tick[d])
        sl = slotof[d]
        dst = regof.get(d, TMP)
        base = {"qk": vTrH, "v": vTrH, "wo": vTrP, "ws": vTrS}[d[0]]
        A("v_add_u32 %s, %d, %s" % (v(vTa), sl * 16384, v(base)))
        for f in range(2):
            for p in range(4):
                if d[0] in ("qk", "v"):
                    off = (32 * (p // 2) + 2 * (p % 2)) * 64 + f * 32
                elif d[0] == "wo":
                    off = (32 * f + 8 * (p // 2) + 2 * (p % 2)) * 64
                else:
                    off = (64 * f + 8 * (p // 2) + 2 * (p % 2)) * 32
                A("ds_read_b64_tr_b16 %s, %s offset:%d" % (reg(dst + 8 * f + 2 * p, 2), v(vTa), off))
        A("s_waitcnt lgkmcnt(0)")
        if d in regof:
            del busy[sl]
            try_issue()
        else:
            for q in range(4):
                ar, off = lds_frag_addr(d, q)
                A("ds_write_b128 %s, %s offset:%d" % (ar, v(TMP + 4 * q, 4), off))
    A("s_waitcnt lgkmcnt(0)")
    A("s_barrier")

    c0 = 32
    A("v_and_b32 %s, 1, %s" % (t2, L))
    A("v_lshlrev_b32 %s, 4, %s" % (t2, t2))
    A("v_mov_b32 %s, 0x3f80" % t3)
    A("v_lshlrev_b32 %s, %s, %s" % (t3, t2, t3))
    A("v_lshrrev_b32 %s, 1, %s" % (t2, t0))
    for r in range(4):
        A("v_cmp_eq_u32 vcc, %d, %s" % (r, t2))
        A("s_nop 1")
        A("v_cndmask_b32 %s, 0, %s, vcc" % (v(c0 + r), t3))
    A("ds_write_b128 %s, %s offset:%d" % (v(vLX), v(c0, 4), L_SEL - X0))
    A("v_mov_b32 %s, 0x3f803f80" % v(c0 + 4))
    A("v_mov_b32 %s, 0x3f803f80" % v(c0 + 5))
    A("v_cmp_gt_u32 vcc, 2, %s" % t1)
    A("s_nop 1")
    A("v_cndmask_b32 %s, 0, %s, vcc" % (v(c0 + 6), v(c0 + 4)))
    A("v_cndmask_b32 %s, 0, %s, vcc" % (v(c0 + 7), v(c0 + 4)))
    A("ds_write_b128 %s, %s offset:%d" % (v(vLX), v(c0 + 4, 4), L_ONE - X0))

    A("s_lshl_b32 %s, %s, 14" % (s(sKV), s(sH)))
    A("s_lshl_b32 %s, %s, 12" % (s(sT), s(sW)))
    A("s_add_u32 %s, %s, %s" % (s(sKV), s(sKV), s(sT)))
    A("s_add_u32 %s, %s, %d" % (s(sKV), s(sKV), WS_KV - X0 - 32 * 16384))
    A("s_add_u32 %s, %s, %d" % (s(sM0), s(sT), L_KX))
    A("v_and_b32 %s, 7, %s" % (v(32), L))
    A("v_mul_u32_u24 %s, 1152, %s" % (v(32), v(32)))
    A("v_lshrrev_b32 %s, 3, %s" % (v(33), L))
    A("v_lshl_add_u32 %s, %s, 4, %s" % (v(32), v(33), v(32)))
    A("s_lshr_b32 %s, %s, 3" % (s(sT), s(sAo)))
    for j in range(3):
        A("buffer_load_dwordx4 %s, %s, %s, %s offen offset:%d" % (v(AR[j], 4), v(32), s(M0S, 4), s(sT), j * 128))
    lp = A.newlabel("Lpinit")
    A("s_mov_b32 %s, 0" % s(sSpin))
    A("v_mov_b32 v33, 64")
    A.label(lp)
    A("buffer_load_dword v32, v33, %s, 0 offen sc1" % s(DBG, 4))
    A("s_add_u32 %s, %s, 1" % (s(sSpin), s(sSpin)))
    A("s_cmp_gt_u32 %s, %d" % (s(sSpin), SPIN_MAX))
    A("s_cbranch_scc1 Lchain_exit")
    A("s_waitcnt vmcnt(0)")
    A("v_cmp_gt_u32 vcc, 32, v32")
    A("s_cbranch_vccnz %s" % lp)

    A("s_mov_b32 %s, 0" % s(sStep))
    A("s_mov_b32 %s, %d" % (s(sIn1Z), OOB))
    A("s_mov_b32 %s, %d" % (s(sIn2Z), OOB))
    G = [vA, 10, 11]
    def zero(r, n=4):
        for k in range(0, n, 2):
            A("v_mov_b64 %s, 0" % v(r + k, 2))
    def pre_a():
        for q in range(4):
            rdres(("qk", 0, 1), q)
        A("v_mov_b64 %s, -1" % v(VA1, 2))
        A("v_mov_b64 %s, -1" % v(VA1 + 2, 2))
        for gi in range(3):
            A("v_add_u32 %s, %s, %s" % (v(G[gi]), s(sAo + 3 * gi), v(vLX)))
        A("v_lshlrev_b32 %s, 2, %s" % (v(VA0), v(vLX)))
    def pre_s():
        A("s_and_b32 %s, %s, 1" % (s(sT), s(sStep)))
        A("s_mul_i32 %s, %s, %d" % (s(sT), s(sT), IN1_SLOT))
        A("s_add_u32 %s, %s, %d" % (s(sSt), s(sT), WS_IN1))
        for p in range(1, 5):
            A("s_add_u32 %s, %s, %d" % (s(sSt + p), s(sSt), p * 16384))
        A("s_add_u32 %s, %s, %s" % (s(sIn1R), s(sSt), s(sUo)))
        A("s_and_b32 %s, %s, 3" % (s(sT), s(sStep)))
        A("s_lshl_b32 %s, %s, 14" % (s(sT), s(sT)))
        A("s_add_u32 %s, %s, %d" % (s(sIn2W), s(sT), WS_IN2))
        A("s_add_u32 %s, %s, %d" % (s(sKV), s(sKV), 32 * 16384))
        A("s_add_u32 %s, %s, %d" % (s(sWarm), s(sKV), 32 * 16384 - 3 * X0))
        A("s_lshl_b32 %s, %s, 5" % (s(sT), s(sStep)))
        A("s_add_u32 %s, %s, %s" % (s(sT), s(sT), s(sH)))
        A("s_lshl_b32 %s, %s, 13" % (s(sT), s(sT)))
        A("s_add_u32 %s, %s, %d" % (s(sPub), s(sT), WS_KVM - X0 - 2048))
        A("s_lshl_b32 %s, %s, 10" % (s(sT2), s(sW)))
        A("s_add_u32 %s, %s, %s" % (s(sPubV), s(sPub), s(sT2)))
        A("s_add_u32 %s, %s, 4096" % (s(sPubV), s(sPubV)))
        A("s_cmp_ge_u32 %s, 2" % s(sW))
        A("s_cselect_b32 %s, %s, %d" % (s(sPub), s(sPub), OOB))
        A("s_mov_b32 m0, %s" % s(sM0))
    pre_a()
    pre_s()
    zero(T[0], 16)
    if tot:
        A("s_memtime s[96:97]")
    A("s_waitcnt lgkmcnt(0)")

    A(".p2align 6")
    A.label("Lstep")
    A.ds_n = 100; A.vm_n = 100
    nstamp[0] = 0
    stamp()
    def smf(acc, areg, breg):
        A("v_smfmac_f32_16x16x64_bf16 %s, %s, %s, %s" % (v(acc, 4), v(areg, 4), reg(breg, 8), v(vIdx)))
    def mf(acc, a, b, first):
        A("v_mfma_f32_16x16x32_bf16 %s, %s, %s, %s" % (v(acc, 4), v(a, 4), v(b, 4), "0" if first else v(acc, 4)))
    def mf16(acc, a, b, first):
        A("v_mfma_f32_16x16x16_bf16 %s, %s, %s, %s" % (v(acc, 4), v(a, 2), v(b, 2), "0" if first else v(acc, 4)))
    atk = {0: 0, 1: 0, 2: 0}
    def rdA(i):
        if i < 9:
            atk[i] = A.ds("ds_read_b128 %s, %s offset:%d" % (v(AR[i % 3], 4), v(G[i // 3]), L_MEM - X0 + (i % 3) * 1024))
        else:
            atk[i] = A.ds("ds_read_b128 %s, %s offset:%d" % (v(AR[i % 3], 4), v(vLX), L_MEM - X0 + (i - 9) * 1024))
    st = {}
    side = []
    for i in range(4):
        side.append(lambda i=i: st.__setitem__("dma", A.vm("buffer_load_dwordx4 %s, %s, %s offen offset:%d sc1 lds" % (v(vLX), s(WS, 4), s(sKV), i * 1024))))
    side.append(lambda: A("s_mov_b32 m0, %d" % L_DUMMY))
    side.append(lambda: A.vm("buffer_store_dword %s, %s, %s, %s offen %s" % (v(VA1), v(vP2), s(WS, 4), s(sIn2Z), st_flags)))
    for j in range(4):
        side.append(lambda j=j: A.vm("buffer_store_dwordx4 %s, %s, %s, %s offen offset:%d %s" % (v(VA1, 4), v(vLX), s(WS, 4), s(sIn1Z), j * 1024, st_flags)))
    side.append(lambda: A.vm("buffer_load_dword %s, %s, %s offen sc1 lds" % (v(VA0), s(WS, 4), s(sWarm))))
    if "nodma" in X:
        st["dma"] = A.vm_n
        side = side[4:]
    if "noreset" in X:
        side = side[:-6] + side[-1:]
    if "nowarm" in X:
        side = side[:-1]
    def pop_side(n=1):
        for _ in range(n):
            if side:
                side.pop(0)()
    tbt = 0
    wts = []
    for j in range(9):
        need = atk[j]
        if j in res_qk:
            need = max(need, tbt)
        if need:
            A.wait_ds(need)
        b0 = regof[("qk", j, 0)]
        b1 = TB if j in res_qk else regof[("qk", j, 1)]
        nxt = ("qk", j + 2, 1) if (j in res_qk and j + 2 in res_qk) else None
        if j == 0:
            wts.append(A.ds("ds_write_b128 %s, %s offset:%d" % (v(G[0]), v(AR[0], 4), L_MEM - X0)))
        smf(T[2], AR[j % 3], b1)
        if j == 0:
            wts.append(A.ds("ds_write_b128 %s, %s offset:%d" % (v(G[0]), v(AR[1], 4), L_MEM - X0 + 1024)))
        elif nxt: rdres(nxt, 0)
        else: pop_side(1)
        smf(T[3], AR[j % 3], b1 + 8)
        if j == 0:
            wts.append(A.ds("ds_write_b128 %s, %s offset:%d" % (v(G[0]), v(AR[2], 4), L_MEM - X0 + 2048)))
            rdres(nxt, 0)
        if nxt: rdres(nxt, 1)
        else: pop_side(1)
        smf(T[0], AR[j % 3], b0)
        if nxt: rdres(nxt, 2)
        else: pop_side(1)
        smf(T[1], AR[j % 3], b0 + 8)
        if nxt: tbt = rdres(nxt, 3)
        if j == 1:
            pop_side(1)
            A.wait_ds(wts[-1])
            A("s_barrier")
            rdA(3)
        if j >= 1:
            rdA(j + 3)
        if j == 7:
            A.wait_vm(st["dma"])
            A("s_barrier")
            zero(VA0, 4)
            zero(VA1, 4)
    assert not side
    stamp()
    tk = {}
    def rdkx(t, ks, dst):
        tk[("x", t, ks)] = A.ds("ds_read_b128 %s, %s offset:%d" % (v(dst, 4), v(vLX), L_KX - X0 + (t * 4 + ks) * 1024))
    def vmm(kk, t):
        i = 9 + kk
        if t == 0:
            A.wait_ds(atk[i])
        smf(VA[t], AR[i % 3], regof[("v", kk)] + 8 * t)
    def drain_pair(ta, tb_, dst):
        for r in range(4):
            A("v_permlane32_swap_b32 %s, %s" % (v(ta + r), v(tb_ + r)))
        A("v_pk_add_f32 %s, %s, %s" % (v(ta, 2), v(ta, 2), v(tb_, 2)))
        A("v_pk_add_f32 %s, %s, %s" % (v(ta + 2, 2), v(ta + 2, 2), v(tb_ + 2, 2)))
        A("v_cvt_pk_bf16_f32 %s, %s, %s" % (v(dst), v(ta), v(ta + 1)))
        A("v_cvt_pk_bf16_f32 %s, %s, %s" % (v(dst + 1), v(ta + 2), v(ta + 3)))
    rdkx(0, 0, TB); rdkx(1, 0, TB + 4); rdkx(0, 1, TB + 8); rdkx(1, 1, TB + 12)
    drain_pair(T[2], T[3], T[3])
    A.ds("ds_write_b64 %s, %s offset:%d" % (v(vEw), v(T[3], 2), L_QK - X0 + 512))
    drain_pair(T[0], T[1], T[1])
    wq = A.ds("ds_write_b64 %s, %s offset:%d" % (v(vEw), v(T[1], 2), L_QK - X0))
    vmm(0, 0)
    rdkx(0, 2, T[0])
    vmm(0, 1)
    rdA(12)
    if "nopub" not in X: A.vm("buffer_store_dwordx2 %s, %s, %s, %s offen offset:512 sc1" % (v(T[3], 2), v(vEw), s(WS, 4), s(sPub)))
    vmm(1, 0)
    if "nopub" not in X: A.vm("buffer_store_dwordx2 %s, %s, %s, %s offen sc1" % (v(T[1], 2), v(vEw), s(WS, 4), s(sPub)))
    vmm(1, 1)
    vmm(2, 0)
    A("s_cmp_eq_u32 %s, %d" % (s(sStep), nsteps - 1))
    vmm(2, 1)
    vmm(3, 0)
    vmm(3, 1)
    A("s_barrier")
    stamp()
    A("s_cbranch_scc1 Llast")
    last_state = (A.ds_n, dict(atk))
    SX0, SX1, SM = T[1], T[3], T[0]
    QF = [T[2], AR[1], AR[2], AR[0]]
    def rdq(ks):
        for x in range(2):
            tk[("q", ks)] = A.ds("ds_read_b64_tr_b16 %s, %s offset:%d" % (v(QF[ks] + 2 * x, 2), v(vQKr), ks * 512 + x * 64))
    def rdkm(ks, dst):
        for x in range(2):
            tk[("m", ks)] = A.ds("ds_read_b64_tr_b16 %s, %s offset:%d" % (v(dst + 2 * x, 2), v(vQKr), 2048 + ks * 512 + x * 64))
    for ks in range(4):
        rdq(ks)
    A("v_add_u32 %s, %s, %s" % (v(vA), s(sW2k), v(vLX)))
    A.wait_ds(tk[("q", 0)])
    mf(SX0, TB, QF[0], True);       rdkx(1, 2, TB)
    mf(SX1, TB + 4, QF[0], True);   rdkx(0, 3, TB + 4)
    A.wait_ds(tk[("q", 1)])
    mf(SX0, TB + 8, QF[1], False);  rdkx(1, 3, TB + 8)
    mf(SX1, TB + 12, QF[1], False); rdkm(0, TB + 12)
    A.wait_ds(tk[("x", 1, 2)])
    mf(SX0, T[0], QF[2], False)
    mf(SX1, TB, QF[2], False);      rdkm(1, TB)
    A.wait_ds(tk[("x", 1, 3)])
    mf(SX0, TB + 4, QF[3], False);  rdkm(2, TB + 4)
    mf(SX1, TB + 8, QF[3], False);  rdkm(3, TB + 8)
    VF = [TB + 12, T[2]]
    ONE = TB
    m, m2, m3 = 10, 11, vA
    A.wait_ds(tk[("m", 1)])
    mf(SM, TB + 12, QF[0], True)
    for t in range(2):
        tk[("vf", t)] = A.ds("ds_read_b128 %s, %s offset:%d" % (v(VF[t], 4), v(vA), L_VX - X0 + t * 1024))
    mf(SM, TB, QF[1], False)
    rdA(13)
    tk["one"] = A.ds("ds_read_b128 %s, %s offset:%d" % (v(ONE, 4), v(vLX), L_ONE - X0))
    A.wait_ds(tk[("m", 3)])
    mf(SM, TB + 4, QF[2], False)
    rdA(14)
    A("v_max3_f32 %s, %s, %s, %s" % (v(m2), v(SX0), v(SX0 + 1), v(SX0 + 2)))
    mf(SM, TB + 8, QF[3], False)
    rdA(15)
    A("v_max3_f32 %s, %s, %s, %s" % (v(m2), v(m2), v(SX0 + 3), v(SX1)))
    stamp()
    A("v_max3_f32 %s, %s, %s, %s" % (v(m2), v(m2), v(SX1 + 1), v(SX1 + 2)))
    A("v_max_f32 %s, %s, %s" % (v(m2), v(m2), v(SX1 + 3)))
    vmm(4, 0)
    vmm(4, 1)
    rdA(16)
    A("v_max3_f32 %s, %s, %s, %s" % (v(m2), v(m2), v(SM), v(SM + 1)))
    A("v_max3_f32 %s, %s, %s, %s" % (v(m), v(m2), v(SM + 2), v(SM + 3)))
    A("v_max3_f32 %s, %s, %s, %s" % (v(m2), v(m2), v(SM + 2), v(SM + 3)))
    vmm(5, 0)
    A("v_permlane32_swap_b32 %s, %s" % (v(m), v(m2)))
    A("v_max_f32 %s, %s, %s" % (v(m3), v(m), v(m2)))
    A("v_max_f32 %s, %s, %s" % (v(m2), v(m), v(m2)))
    vmm(5, 1)
    rdA(17)
    A("v_permlane16_swap_b32 %s, %s" % (v(m3), v(m2)))
    A("v_max_f32 %s, %s, %s" % (v(m), v(m3), v(m2)))
    A("v_mul_f32 %s, %s, %s" % (v(m), s(sC), v(m)))
    PX, PM = TB + 4, TB + 8
    def fm(base):
        for r in (0, 2):
            A("v_pk_fma_f32 %s, %s, %s, %s op_sel_hi:[1,0,0] neg_lo:[0,0,1] neg_hi:[0,0,1]" % (v(base + r, 2), v(base + r, 2), s(sC, 2), v(m, 2)))
    def ex(r):
        A("v_exp_f32 %s, %s" % (v(r), v(r)))
    def cv(dst, base):
        A("v_cvt_pk_bf16_f32 %s, %s, %s" % (v(dst), v(base), v(base + 1)))
        A("v_cvt_pk_bf16_f32 %s, %s, %s" % (v(dst + 1), v(base + 2), v(base + 3)))
    fm(SX0); fm(SX1); fm(SM)
    vmm(6, 0)
    ex(SX0); ex(SX0 + 1)
    vmm(6, 1)
    ex(SX0 + 2); ex(SX0 + 3)
    vmm(7, 0)
    ex(SX1); ex(SX1 + 1)
    vmm(7, 1)
    ex(SX1 + 2); ex(SX1 + 3)
    vmm(8, 0)
    cv(PX, SX0)
    vmm(8, 1)
    cv(PX + 2, SX1)
    ex(SM)
    ex(SM + 1)
    LS = AR[0]
    VH = AR[1]
    OT = [T[1], T[3]]
    mf(OT[0], VF[0], PX, True)
    ex(SM + 2)
    mf(OT[1], VF[1], PX, True)
    ex(SM + 3)
    mf16(LS, ONE, PX, True)
    cv(VH, VA0)
    mf16(LS, ONE, PX + 2, False)
    cv(PM, SM)
    cv(VH + 2, VA1)
    mf16(LS, ONE + 2, PM, False)
    OA = [VA0, VA1, T[0], AR[2]]
    OS = T[2]
    zero(OA[0])
    mf16(OT[0], VH, PM, False)
    zero(OA[1])
    mf16(OT[1], VH + 2, PM, False)
    zero(OA[2])
    if "nopub" not in X: A.vm("buffer_store_dwordx4 %s, %s, %s, %s offen sc1" % (v(VH, 4), v(vLX), s(WS, 4), s(sPubV)))
    A("v_rcp_f32 %s, %s" % (v(LS), v(LS)))
    zero(OA[3])
    A("v_add_u32 %s, %s, %s" % (v(vA), s(sOo), v(vLX)))
    OF = [AR[1], T[1], T[3], AR[0]]
    OF0 = OF[0]
    for t in range(2):
        for r in (0, 2):
            A("v_pk_mul_f32 %s, %s, %s op_sel_hi:[1,0]" % (v(OT[t] + r, 2), v(OT[t] + r, 2), v(LS, 2)))
    cv(OF0, OT[0])
    cv(OF0 + 2, OT[1])
    wo_ = A.ds("ds_write_b128 %s, %s offset:%d" % (v(vA), v(OF0, 4), L_O - X0))
    R1, R2, R3 = ("wo", 1, 0), ("wo", 2, 1), ("wo", 3, 1)
    rt = {}
    def bfrag(p, pos):
        d = ("wo", p, pos // 2)
        if d in regof:
            return regof[d] + 8 * (pos % 2)
        A.wait_ds(rt[(d, pos % 2)])
        return TB + 8 * (pos % 2)
    rdres(R1, 0); rt[(R1, 0)] = rdres(R1, 1)
    smf(OA[0], OF0, bfrag(0, 0))
    rdres(R1, 2)
    smf(OA[2], OF0, bfrag(2, 0))
    rt[(R1, 1)] = rdres(R1, 3)
    smf(OA[3], OF0, bfrag(3, 0))
    A("v_add_u32 %s, %s, %s" % (v(10), s(sOo + 1), v(vLX)))
    A("v_add_u32 %s, %s, %s" % (v(11), s(sOo + 2), v(vLX)))
    A("v_add_u32 %s, %s, %s" % (v(vA), s(sOo + 3), v(vLX)))
    smf(OA[1], OF0, bfrag(1, 0))
    A("s_barrier")
    stamp()
    ot = {}
    ot[1] = A.ds("ds_read_b128 %s, %s offset:%d" % (v(OF[1], 4), v(10), L_O - X0))
    h0 = A.ds("ds_read_b128 %s, %s offset:%d" % (v(OF0, 4), v(vOrH), L_O - X0))
    ot[2] = A.ds("ds_read_b128 %s, %s offset:%d" % (v(OF[2], 4), v(11), L_O - X0))
    ot[3] = A.ds("ds_read_b128 %s, %s offset:%d" % (v(OF[3], 4), v(vA), L_O - X0))
    rdres(R2, 0); rt[(R2, 0)] = rdres(R2, 1)
    zero(OS)
    def ostore(acc, p):
        cv(acc, acc)
        A("v_min_u32 %s, -2, %s" % (v(acc), v(acc)))
        A("v_min_u32 %s, -2, %s" % (v(acc + 1), v(acc + 1)))
        if "nost" not in X: A.vm("buffer_store_dwordx2 %s, %s, %s, %s offen %s" % (v(acc, 2), v(vP1), s(WS, 4), s(sSt + p), st_flags))
    A("v_bfe_u32 %s, %s, 9, 1" % (v(vA), v(vLX)))
    A("v_mul_u32_u24 %s, 8188, %s" % (v(vA), v(vA)))
    A("v_sub_u32 %s, %s, %s" % (v(vA), v(vP1), v(vA)))
    A.wait_ds(ot[1])
    smf(OA[1], OF[1], TB + 8)
    rdres(R2, 2)
    smf(OA[0], OF[1], bfrag(0, 1))
    rt[(R2, 1)] = rdres(R2, 3)
    smf(OA[2], OF[1], bfrag(2, 1))
    smf(OA[3], OF[1], bfrag(3, 1))
    h1 = A.ds("ds_read_b128 %s, %s offset:%d" % (v(OF[1], 4), v(vOrH), L_O - X0 + 2048))
    A.wait_ds(rt[(R2, 0)])
    smf(OS, OF0, regof[("ws",)])
    smf(OA[2], OF[2], TB)
    rdres(R3, 0)
    smf(OA[0], OF[2], bfrag(0, 2))
    rt[(R3, 0)] = rdres(R3, 1)
    smf(OA[2], OF[3], bfrag(2, 3))
    rdres(R3, 2)
    smf(OA[0], OF[3], bfrag(0, 3))
    rt[(R3, 1)] = rdres(R3, 3)
    A.wait_ds(h1)
    smf(OS, OF[1], regof[("ws",)] + 8)
    smf(OA[1], OF[2], bfrag(1, 2))
    ostore(OA[2], 2)
    smf(OA[1], OF[3], bfrag(1, 3))
    ostore(OA[0], 0)
    smf(OA[3], OF[2], bfrag(3, 2))
    A("v_permlane32_swap_b32 %s, %s" % (v(OS), v(OS + 2)))
    smf(OA[3], OF[3], bfrag(3, 3))
    A("v_permlane32_swap_b32 %s, %s" % (v(OS + 1), v(OS + 3)))
    A("v_pk_add_f32 %s, %s, %s" % (v(OS, 2), v(OS, 2), v(OS + 2, 2)))
    A("v_cvt_pk_bf16_f32 %s, %s, %s" % (v(OS), v(OS), v(OS + 1)))
    A("v_min_u32 %s, -2, %s" % (v(OS), v(OS)))
    A.vm("buffer_store_dword %s, %s, %s, %s offen %s" % (v(OS), v(vA), s(WS, 4), s(sSt + 4), st_flags))
    ostore(OA[1], 1)
    ostore(OA[3], 3)
    stamp()

    lhop2 = A.newlabel("Lhop2")
    P = T[0]
    SEL = AR[0]
    D = AR[1]
    mx = AR[2]
    A("ds_read_b128 %s, %s offset:%d" % (v(SEL, 4), v(vLX), L_SEL - X0))
    pre_a()
    A("s_mov_b32 %s, %s" % (s(sIn1Z), s(sIn1R)))
    A("s_xor_b32 %s, %s, %d" % (s(sIn2Z), s(sIn2W), 2 * IN2_SLOT))
    A("s_mov_b32 %s, %s" % (s(sH2), s(sIn2W)))
    A("s_add_u32 %s, %s, %s" % (s(sIn2R), s(sIn2W), s(sAo)))
    A("s_sub_u32 %s, %s, %d" % (s(sIn2R), s(sIn2R), X0))
    A("s_add_u32 %s, %s, 1" % (s(sStep), s(sStep)))
    pre_s()
    A("s_cmp_ge_u32 %s, %d" % (s(sUnit), 0 if "nohop" in X else 72))
    A("s_cbranch_scc1 %s" % lhop2)
    A("s_mov_b32 %s, 0" % s(sSpin))
    for _ in range(d1):
        A("s_nop 15")
    A("s_waitcnt lgkmcnt(0)")
    lp1 = A.newlabel("Lp1")
    A.label(lp1)
    for j in range(4):
        A("buffer_load_dwordx4 %s, %s, %s, %s offen offset:%d sc1" % (v(P + 4 * j, 4), v(vLX), s(WS, 4), s(sIn1Z), j * 1024))
    A("s_add_u32 %s, %s, 1" % (s(sSpin), s(sSpin)))
    A("s_cmp_gt_u32 %s, %d" % (s(sSpin), SPIN_MAX))
    A("s_cbranch_scc1 Lchain_exit")
    for j in range(4):
        A("s_waitcnt vmcnt(%d)" % (3 - j))
        mf(D, P + 4 * j, SEL, j == 0)
        if j == 0:
            A("v_max3_u32 %s, %s, %s, %s" % (v(mx), v(P), v(P + 1), v(P + 2)))
            A("v_max_u32 %s, %s, %s" % (v(mx), v(mx), v(P + 3)))
        else:
            A("v_max3_u32 %s, %s, %s, %s" % (v(mx), v(mx), v(P + 4 * j), v(P + 4 * j + 1)))
            A("v_max3_u32 %s, %s, %s, %s" % (v(mx), v(mx), v(P + 4 * j + 2), v(P + 4 * j + 3)))
    A("v_cmp_eq_u32 vcc, -1, %s" % v(mx))
    A("s_cbranch_vccnz %s" % lp1)
    A("s_nop 3")
    A("v_permlane32_swap_b32 %s, %s" % (v(D), v(D + 2)))
    A("v_permlane32_swap_b32 %s, %s" % (v(D + 1), v(D + 3)))
    A("v_pk_add_f32 %s, %s, %s" % (v(D, 2), v(D, 2), v(D + 2, 2)))
    A("v_cvt_pk_bf16_f32 %s, %s, %s" % (v(D), v(D), v(D + 1)))
    A("v_min_u32 %s, -2, %s" % (v(D), v(D)))
    A("buffer_store_dword %s, %s, %s, %s offen %s" % (v(D), v(vP2), s(WS, 4), s(sH2), st_flags))
    if prof:
        A("s_mov_b32 s90, %s" % s(sSpin))
    A.label(lhop2)
    stamp()
    zero(T[0], 16)
    A("s_barrier")
    if prof:
        A("s_waitcnt lgkmcnt(0)")
        A("s_lshl_b32 %s, %s, 2" % (s(sT), s(sH)))
        A("s_add_u32 %s, %s, %s" % (s(sT), s(sT), s(sW)))
        A("s_lshl_b32 %s, %s, 6" % (s(sT), s(sT)))
        A("s_add_u32 %s, %s, %s" % (s(sT), s(sT), s(sStep)))
        A("s_lshl_b32 %s, %s, 6" % (s(sT), s(sT)))
        A("s_add_u32 %s, %s, %d" % (s(sT), s(sT), WS_PROF))
        A("v_mov_b32 %s, 0" % v(AR[0] + 1))
        A("s_mov_b64 exec, 1")
        for k in range(nstamp[0]):
            A("v_mov_b32 %s, %s" % (v(AR[0]), s(sPT + 2 * k)))
            A("buffer_store_dword %s, %s, %s, %s offen offset:%d" % (v(AR[0]), v(AR[0] + 1), s(WS, 4), s(sT), 4 * k))
        A("v_mov_b32 %s, s90" % v(AR[0]))
        A("buffer_store_dword %s, %s, %s, %s offen offset:%d" % (v(AR[0]), v(AR[0] + 1), s(WS, 4), s(sT), 56))
        A("v_mov_b32 %s, s91" % v(AR[0]))
        A("buffer_store_dword %s, %s, %s, %s offen offset:%d" % (v(AR[0]), v(AR[0] + 1), s(WS, 4), s(sT), 60))
        A("s_mov_b64 exec, -1")
    else:
        for _ in range(d2):
            A("s_nop 15")
    if "nohop" in X:
        A("s_waitcnt lgkmcnt(0)")
        A("s_branch Lstep")
    A("s_mov_b32 %s, 0" % s(sSpin))
    lp2 = A.newlabel("Lp2")
    A.label(lp2)
    for j in range(3):
        A("buffer_load_dwordx4 %s, %s, %s, %s offen offset:%d sc1" % (v(AR[j], 4), v(vLX), s(WS, 4), s(sIn2R), j * 1024))
    A("s_add_u32 %s, %s, 1" % (s(sSpin), s(sSpin)))
    A("s_cmp_gt_u32 %s, %d" % (s(sSpin), SPIN_MAX))
    A("s_cbranch_scc1 Lchain_exit")
    c1, c2 = VA0 + 2, VA0 + 3
    Q = AR[0]
    A("s_waitcnt vmcnt(2)")
    A("v_max3_u32 %s, %s, %s, %s" % (v(c1), v(Q), v(Q + 1), v(Q + 2)))
    A("s_waitcnt vmcnt(1)")
    A("v_max3_u32 %s, %s, %s, %s" % (v(c2), v(Q + 3), v(Q + 4), v(Q + 5)))
    A("v_max3_u32 %s, %s, %s, %s" % (v(c1), v(c1), v(Q + 6), v(Q + 7)))
    A("s_waitcnt vmcnt(0) lgkmcnt(0)")
    A("v_max3_u32 %s, %s, %s, %s" % (v(c2), v(c2), v(Q + 8), v(Q + 9)))
    A("v_max3_u32 %s, %s, %s, %s" % (v(c1), v(c1), v(Q + 10), v(Q + 11)))
    A("v_max_u32 %s, %s, %s" % (v(c1), v(c1), v(c2)))
    A("v_cmp_ne_u32 vcc, -1, %s" % v(c1))
    if prof:
        A("s_mov_b32 s91, %s" % s(sSpin))
    A("s_cmp_eq_u64 vcc, exec")
    A("s_cbranch_scc1 Lstep")
    A("s_branch %s" % lp2)

    A.label("Llast")
    A.ds_n, atk2 = last_state
    atk.clear(); atk.update(atk2)
    for kk in range(4, 9):
        rdA(9 + kk)
        vmm(kk, 0); vmm(kk, 1)
    A("s_nop 7")
    A("s_nop 1")
    cv(TB, VA0)
    cv(TB + 2, VA1)
    A("buffer_store_dwordx4 %s, %s, %s, %s offen sc1" % (v(TB, 4), v(vLX), s(WS, 4), s(sPubV)))
    A.label("Lfin")
    if tot:
        A("s_cmp_lg_u32 %s, 3" % s(sW))
        A("s_cbranch_scc1 Lchain_exit")
        A("s_memtime s[92:93]")
        A("s_waitcnt lgkmcnt(0)")
        A("s_sub_u32 s92, s92, s96")
        A("v_mov_b32 v20, s92")
        A("s_lshl_b32 %s, %s, 2" % (s(sT), s(sH)))
        A("v_mov_b32 v21, %s" % s(sT))
        A("s_mov_b64 exec, 1")
        A("s_sub_u32 s98, s96, s98")
        A("v_mov_b32 v22, s98")
        A("s_cmp_lt_u32 %s, 8" % s(sH))
        A("s_cbranch_scc0 Lchain_exit")
        A("buffer_store_dword v20, v21, %s, 0 offen offset:128" % s(DBG, 4))
        A("buffer_store_dword v22, v21, %s, 0 offen offset:192" % s(DBG, 4))
    A.label("Lchain_exit")
    A("s_endpgm")


def standalone(prof=False, **kw):
    A = Asm()
    hdr = """; @launch kernel=chain_kernel grid=(256,1,1) block=(256,1,1) lds=163840
.amdgcn_target "amdgcn-amd-amdhsa--gfx950"
.text
.globl chain_kernel
.p2align 8
.type chain_kernel,@function
chain_kernel:
"""
    A("s_cmp_ge_u32 s2, 256")
    A("s_cbranch_scc1 Lchain_exit")
    A("s_load_dwordx4 s[20:23], s[0:1], 112")
    A("s_getreg_b32 s28, hwreg(HW_REG_XCC_ID)")
    A("s_and_b32 s28, s28, 15")
    A("s_cmp_lg_u32 s28, 0")
    A("s_cbranch_scc1 Lchain_exit")
    A("s_waitcnt lgkmcnt(0)")
    A("s_mov_b32 s4, s22")
    A("s_mov_b32 s5, s23")
    A("s_mov_b32 s6, %d" % WS_BYTES)
    A("s_mov_b32 s7, 0x00020000")
    A("s_mov_b32 s22, 256")
    A("s_mov_b32 s23, 0x00020000")
    A("v_mov_b32 v1, 1")
    A("v_mov_b32 v2, 0")
    A("v_cmp_eq_u32 vcc, 0, v0")
    A("s_and_saveexec_b64 s[30:31], vcc")
    A("s_cbranch_execz Lnoticket")
    A("buffer_atomic_add v1, v2, s[20:23], 0 offen sc0")
    A("s_waitcnt vmcnt(0)")
    A("ds_write_b32 v2, v1")
    A("s_waitcnt lgkmcnt(0)")
    A.label("Lnoticket")
    A("s_mov_b64 exec, s[30:31]")
    A("s_barrier")
    A("ds_read_b32 v1, v2")
    A("s_waitcnt lgkmcnt(0)")
    A("v_readfirstlane_b32 s28, v1")
    A("s_barrier")
    A("s_cmp_ge_u32 s28, 32")
    A("s_cbranch_scc1 Lchain_exit")
    gen_chain(A, prof=prof, **kw)
    tail = """
.section .rodata,"a"
.p2align 6
.amdhsa_kernel chain_kernel
  .amdhsa_next_free_vgpr 512
  .amdhsa_next_free_sgpr 102
  .amdhsa_accum_offset 256
  .amdhsa_group_segment_fixed_size 0
  .amdhsa_kernarg_size 128
  .amdhsa_user_sgpr_count 2
  .amdhsa_user_sgpr_kernarg_segment_ptr 1
  .amdhsa_system_sgpr_workgroup_id_x 1
.end_amdhsa_kernel
"""
    return hdr + A.text() + tail

if __name__ == "__main__":
    import sys
    d1 = int(sys.argv[1]) if len(sys.argv) > 1 else 0
    d2 = int(sys.argv[2]) if len(sys.argv) > 2 else 0
    open("chain_p.s", "w").write(standalone(True, d1=d1, d2=d2))
    open("chain_np.s", "w").write(standalone(False, d1=d1, d2=d2))
    for i, X in enumerate(sys.argv[3:]):
        txt = standalone(False, d1=d1, d2=d2, X=tuple(X.split(",")))
        lines = txt.split("\n")
        a = [k for k, l in enumerate(lines) if l.startswith("Lstep:")][0]
        def drop(pat):
            for k in range(a, len(lines)):
                if pat in lines[k]: lines[k] = "    ; dropped"
        if "drop_dsw" in X: drop("ds_write")
        if "drop_bar" in X: drop("s_barrier")
        if "drop_dsr" in X: drop("ds_read")
        if "drop_buf" in X:
            b = [k for k, l in enumerate(lines) if l.startswith("Lfin:")][0]
            for k in range(a, b):
                if "buffer_" in lines[k]: lines[k] = "    ; dropped"
        if "drop_wait" in X:
            b = [k for k, l in enumerate(lines) if l.startswith("Lfin:")][0]
            for k in range(a, b):
                if "s_waitcnt" in lines[k]: lines[k] = "    ; dropped"
        txt = "\n".join(lines)
        if "nopk" in X:
            import re
            def unpk(mm):
                op = mm.group(1); ops = mm.group(2)
                regs = re.findall(r"([vs])\[(\d+):\d+\]", ops)
                out = []
                for k in range(2):
                    if op == "add": out.append("    v_add_f32 v%d, v%d, v%d" % tuple(int(r[1]) + k for r in regs))
                    if op == "mul": out.append("    v_mul_f32 v%d, v%d, v%d" % (int(regs[0][1]) + k, int(regs[1][1]) + k, int(regs[2][1])))
                    if op == "fma": out.append("    v_fma_f32 v%d, v%d, s%d, -v%d" % (int(regs[0][1]) + k, int(regs[1][1]) + k, int(regs[2][1]), int(regs[3][1])))
                return "\n".join(out)
            txt = re.sub(r"    v_pk_(add|mul|fma)_f32 ([^\n]*)", unpk, txt)
        open("chain_x%d.s" % i, "w").write(txt)
```

```python
from asmlib import *
from layout import *
from gen_gemm1 import f32, kernel_head, ws_srd, KD
import math

def ffn2_task(A, sTask, ldf="", stf="", wait_h=None):
    D = 6
    A.c("=========== FFN2 task ===========")
    A("s_load_dwordx2 s[8:9], s[0:1], 0")
    A("s_load_dwordx4 s[12:15], s[0:1], 80")
    A("s_load_dwordx2 s[24:25], s[0:1], 96")
    A("v_lshrrev_b32 v1, 6, v0")
    A("s_nop 0")
    A("v_readfirstlane_b32 s29, v1")
    A("v_and_b32 v1, 63, v0")
    A("s_mul_i32 s30, %s, 171" % s(sTask))
    A("s_lshr_b32 s30, s30, 10")
    A("s_mul_i32 s31, s30, 6")
    A("s_sub_u32 s31, %s, s31" % s(sTask))
    A("s_waitcnt lgkmcnt(0)")
    A("s_mov_b32 s16, s14")
    A("s_mov_b32 s17, s15")
    A("s_mov_b32 s18, 1152")
    A("s_mov_b32 s19, 0x00020000")
    A("s_mov_b32 s14, %d" % (4608 * 1152))
    A("s_mov_b32 s15, 0x00020000")
    A("s_mov_b32 s10, %d" % (2048 * 1152))
    A("s_mov_b32 s11, 0x00020000")
    A("s_mov_b32 s26, 1152")
    A("s_mov_b32 s27, 0x00020000")
    for i in range(6):
        A("v_add_u32 v8, %d, v1" % (64 * i))
        A("v_mul_u32_u24 v9, 171, v8")
        A("v_lshrrev_b32 v9, 11, v9")
        A("v_mul_u32_u24 v10, 12, v9")
        A("v_sub_u32 v10, v8, v10")
        A("v_mul_u32_u24 v9, 1152, v9")
        A("v_lshl_add_u32 v%d, v10, 4, v9" % (2 + i))
    A("v_lshrrev_b32 v9, 4, v1")
    A("v_bfe_u32 v10, v1, 2, 2")
    A("v_lshl_add_u32 v10, v9, 3, v10")
    A("v_mul_u32_u24 v10, 192, v10")
    A("v_and_b32 v11, 3, v1")
    A("v_lshl_add_u32 v10, v11, 4, v10")
    A("s_mul_i32 s32, s29, %d" % (D * 6144))
    A("v_add_u32 v8, s32, v10")
    A("v_lshlrev_b32 v9, 4, v9")
    A("v_and_b32 v10, 15, v1")
    A("v_mul_u32_u24 v10, 1152, v10")
    A("v_add_u32 v10, v10, v9")
    A("v_lshlrev_b32 v1, 4, v1")
    A("s_mul_i32 s33, s30, %d" % (4 * 144 * 1024))
    A("s_lshl_b32 s34, s29, 10")
    A("s_add_u32 s33, s33, s34")
    A("s_add_u32 s33, s33, %d" % WS_H)
    A("s_mul_i32 s34, s29, %d" % (32 * 1152))
    A("s_mul_i32 s35, s31, 192")
    A("s_add_u32 s34, s34, s35")
    AF = 64
    BF = 160
    def issue(slot):
        for mt in range(4):
            A("s_add_u32 s35, s33, %d" % (mt * 144 * 1024))
            A.vm("buffer_load_dwordx4 %s, v1, s[4:7], s35 offen %s" % (v(AF + 16 * slot + 4 * mt, 4), ldf))
        for i in range(6):
            A("s_add_u32 m0, s32, %d" % (slot * 6144 + i * 1024))
            A("s_nop 0")
            A.vm("buffer_load_dwordx4 v%d, s[12:15], s34 offen lds" % (2 + i))
        A("s_add_u32 s33, s33, 4096")
        A("s_add_u32 s34, s34, %d" % (128 * 1152))
    A("s_lshl_b32 s35, s30, 2")
    A("s_add_u32 s35, s35, s29")
    A("s_mov_b32 s40, s35")
    A("s_mul_i32 s35, s35, %d" % (16 * 1152))
    for ks in range(18):
        A("buffer_load_dwordx4 %s, v10, s[8:11], s35 offen offset:%d" % (v(64 + 4 * ks, 4), ks * 64))
        A("buffer_load_dwordx4 %s, v9, s[24:27], 0 offen offset:%d" % (v(160 + 4 * ks, 4), ks * 64))
    A("s_mul_i32 s35, s31, 192")
    for p in range(3):
        A("buffer_load_dwordx4 %s, v9, s[16:19], s35 offen offset:%d" % (v(16 + 4 * p, 4), p * 64))
    A("s_waitcnt vmcnt(0)")
    for ks in range(18):
        A("v_mfma_f32_16x16x32_bf16 v[12:15], %s, %s, %s" % (v(160 + 4 * ks, 4), v(64 + 4 * ks, 4), "0" if ks == 0 else "v[12:15]"))
    if wait_h: wait_h(A)
    for sl in range(D):
        issue(sl)
    A("v_mul_f32 v12, %s, v12" % f32(-math.log2(math.e)))
    A("v_exp_f32 v12, v12")
    A("s_nop 0")
    A("v_add_f32 v12, 1.0, v12")
    A("v_rcp_f32 v12, v12")
    A("s_nop 0")
    A("v_sub_f32 v13, 1.0, v12")
    for k in range(12):
        A("v_lshlrev_b32 v%d, 16, v%d" % (32 + 2 * k, 16 + k))
        A("v_and_b32 v%d, 0xffff0000, v%d" % (33 + 2 * k, 16 + k))
    for r in range(96):
        A("v_accvgpr_write_b32 a%d, 0" % r)
    A("s_mov_b32 s36, 0")
    lp = A.newlabel("Lf2")
    A.label(lp)
    A("s_cmp_ge_u32 s36, 5")
    A("s_cselect_b32 s33, %d, s33" % OOB)
    A("s_cselect_b32 s34, %d, s34" % OOB)
    for sl in range(D):
        A("s_waitcnt vmcnt(%d)" % (10 * (D - 1)))
        for nt in range(6):
            for x in range(2):
                A("ds_read_b64_tr_b16 %s, v8 offset:%d" % (v(BF + 4 * nt + 2 * x, 2), sl * 6144 + x * 768 + (nt // 2) * 64 + (nt % 2) * 8))
        for nt in range(6):
            A("s_waitcnt lgkmcnt(%d)" % (10 - 2 * nt))
            for mt in range(4):
                acc = a_((mt * 6 + nt) * 4, 4)
                A("v_mfma_f32_16x16x32_bf16 %s, %s, %s, %s" % (acc, v(BF + 4 * nt, 4), v(AF + 16 * sl + 4 * mt, 4), acc))
        issue(sl)
    A("s_add_u32 s36, s36, 1")
    A("s_cmp_lt_u32 s36, 6")
    A("s_cbranch_scc1 %s" % lp)
    A("s_waitcnt vmcnt(0)")
    A("s_barrier")
    A("s_mul_i32 s35, s29, 24576")
    A("v_add_u32 v14, s35, v1")
    for mt in range(4):
        for nt in range(6):
            A("ds_write_b128 v14, %s offset:%d" % (a_((mt * 6 + nt) * 4, 4), mt * 6144 + nt * 1024))
    A("s_mul_i32 s35, s29, 6144")
    A("v_add_u32 v14, s35, v1")
    A("v_add_u32 v15, 49152, v14")
    A("s_waitcnt lgkmcnt(0)")
    A("s_barrier")
    for sw in range(4):
        for nt in range(6):
            A("ds_read_b128 %s, %s offset:%d" % (v(64 + 24 * sw + 4 * nt, 4), "v14" if sw < 2 else "v15", (sw % 2) * 24576 + nt * 1024))
    A("s_mul_i32 s35, s40, 6")
    A("s_add_u32 s35, s35, s31")
    A("s_mul_i32 s35, s35, 6144")
    A("s_add_u32 s35, s35, %d" % WS_BASE)
    A("s_add_u32 s37, s35, 4096")
    A("s_waitcnt lgkmcnt(0)")
    for r in range(0, 24, 2):
        A("v_pk_add_f32 %s, %s, %s" % (v(64 + r, 2), v(64 + r, 2), v(88 + r, 2)))
        A("v_pk_add_f32 %s, %s, %s" % (v(112 + r, 2), v(112 + r, 2), v(136 + r, 2)))
        A("v_pk_add_f32 %s, %s, %s" % (v(64 + r, 2), v(64 + r, 2), v(32 + r, 2)))
        A("v_pk_add_f32 %s, %s, %s" % (v(64 + r, 2), v(64 + r, 2), v(112 + r, 2)))
        A("v_pk_mul_f32 %s, %s, v[12:13] op_sel:[0,1] op_sel_hi:[1,1]" % (v(64 + r, 2), v(64 + r, 2)))
    for nt in range(6):
        A("buffer_store_dwordx4 %s, v1, s[4:7], %s offen offset:%d %s" % (v(64 + 4 * nt, 4), "s35" if nt < 4 else "s37", (nt % 4) * 1024, stf))
    A("v_lshrrev_b32 v14, 2, v1")
    A("s_lshl_b32 s35, s40, 6")
    A("s_add_u32 s35, s35, %d" % WS_G)
    A("s_mov_b64 exec, 0xffff")
    A("buffer_store_dword v12, v14, s[4:7], s35 offen %s" % stf)
    A("s_mov_b64 exec, -1")

def ffn2_kernel(A):
    kernel_head(A, "ffn2_kernel")
    A("s_cmp_ge_u32 s2, 192")
    A("s_cbranch_scc1 Lf2_exit")
    ws_srd(A)
    A("s_and_b32 s48, s2, 7")
    A("s_mul_i32 s48, s48, 24")
    A("s_lshr_b32 s49, s2, 3")
    A("s_add_u32 s48, s48, s49")
    ffn2_task(A, 48)
    A.label("Lf2_exit")
    A("s_endpgm")
```

```python
from asmlib import *
from layout import *

def f32(x):
    import struct
    return "0x%08x" % struct.unpack("<I", struct.pack("<f", x))[0]

def gemm1_setup(A):
    A("s_load_dwordx2 s[8:9], s[0:1], 0")
    A("s_load_dwordx4 s[36:39], s[0:1], 16")
    A("s_load_dwordx2 s[40:41], s[0:1], 32")
    A("s_load_dwordx4 s[44:47], s[0:1], 64")
    A("v_lshrrev_b32 v1, 6, v0")
    A("s_nop 0")
    A("v_readfirstlane_b32 s29, v1")
    A("v_and_b32 v1, 63, v0")
    A("s_waitcnt lgkmcnt(0)")
    A("s_mov_b32 s10, %d" % (2048 * 1152))
    A("s_mov_b32 s11, 0x00020000")
    A("s_mov_b32 s15, 0x00020000")
    A("s_mov_b32 s16, s46")
    A("s_mov_b32 s17, s47")
    A("s_mov_b32 s18, 9216")
    A("s_mov_b32 s19, 0x00020000")
    A("v_lshrrev_b32 v2, 3, v1")
    A("v_mul_u32_u24 v3, 1152, v2")
    A("v_lshrrev_b32 v4, 4, v1")
    A("s_and_b32 s31, s29, 1")
    A("s_lshl_b32 s31, s31, 2")
    A("v_add_u32 v4, s31, v4")
    A("v_and_b32 v5, 7, v1")
    A("v_xor_b32 v4, v4, v5")
    A("v_lshl_add_u32 v3, v4, 4, v3")
    A("s_mul_i32 s31, s29, %d" % (8 * 1152))
    A("v_add_u32 v2, s31, v3")
    A("v_lshrrev_b32 v4, 5, v1")
    A("s_lshl_b32 s31, s29, 1")
    A("v_or_b32 v5, s31, v4")
    A("v_lshlrev_b32 v5, 1, v5")
    A("v_and_b32 v6, 31, v1")
    A("v_xor_b32 v5, v5, v6")
    A("v_lshlrev_b32 v5, 4, v5")
    A("s_and_b32 s31, s29, 1")
    A("s_lshr_b32 s32, s29, 1")
    A("s_lshl_b32 s32, s32, 2")
    A("s_add_u32 s31, s31, s32")
    A("s_lshl_b32 s31, s31, 1")
    A("v_add_u32 v4, s31, v4")
    A("v_lshl_add_u32 v3, v4, 13, v5")
    A("v_mul_u32_u24 v4, 9216, v4")
    A("v_add_u32 v4, v4, v5")
    A("s_lshl_b32 s33, s31, 9")
    A("s_lshl_b32 s34, s29, 10")
    A("v_and_b32 v6, 15, v1")
    A("v_lshrrev_b32 v7, 4, v1")
    A("v_lshrrev_b32 v8, 1, v6")
    A("v_xor_b32 v8, v8, v7")
    A("v_lshlrev_b32 v8, 4, v8")
    A("v_lshl_add_u32 v8, v6, 7, v8")
    A("s_lshr_b32 s31, s29, 1")
    A("s_lshl_b32 s31, s31, 14")
    A("v_add_u32 v5, s31, v8")
    A("v_xor_b32 v6, 64, v5")
    A("v_bfe_u32 v8, v1, 2, 2")
    A("v_and_b32 v9, 1, v7")
    A("v_lshl_add_u32 v9, v9, 2, v8")
    A("v_lshl_add_u32 v8, v7, 3, v8")
    A("v_lshlrev_b32 v8, 9, v8")
    A("s_and_b32 s31, s29, 1")
    A("s_lshl_b32 s31, s31, 8")
    A("s_add_u32 s31, s31, 32768")
    A("v_add_u32 v8, s31, v8")
    A("v_and_b32 v10, 3, v1")
    for nt in range(8):
        A("v_xor_b32 v11, %d, v9" % nt)
        A("v_lshl_add_u32 v11, v11, 5, v8")
        A("v_lshl_add_u32 v%d, v10, 3, v11" % (16 + nt))
    A("v_lshrrev_b32 v12, 1, v10")
    A("v_and_b32 v13, 1, v10")
    A("v_lshlrev_b32 v13, 4, v13")
    for nt in range(8):
        p, t = nt // 2, nt % 2
        A("v_add_u32 v11, %d, v12" % (2 * p))
        A("v_xor_b32 v11, v11, v9")
        A("v_lshl_add_u32 v11, v11, 5, v8")
        A("v_add_u32 v11, v11, v13")
        A("v_add_u32 v%d, %d, v11" % (24 + nt, 8 * t))
    A("v_lshlrev_b32 v7, 4, v7")
    A("v_lshlrev_b32 v1, 4, v1")

FA = [64, 96]
FB = [128, 160]

def gemm1_decode(A, sTask, pre):
    A("s_and_b32 %s, %s, 7" % (s(pre + 4), s(sTask)))
    A("s_lshr_b32 %s, %s, 3" % (s(pre + 3), s(sTask)))
    A("s_mul_i32 %s, %s, %d" % (s(pre), s(pre + 4), 256 * 1152))
    A("s_lshr_b32 %s, %s, 4" % (s(pre + 2), s(pre + 3)))
    A("s_min_u32 %s, %s, 3" % (s(pre + 2), s(pre + 2)))
    A("s_lshl_b32 s31, %s, 4" % s(pre + 2))
    A("s_sub_u32 %s, %s, s31" % (s(pre + 3), s(pre + 3)))
    A("s_lshl_b32 %s, %s, 9" % (s(pre + 1), s(pre + 3)))

def gemm1_srd(A, pre):
    A("s_cmp_eq_u32 %s, 0" % s(pre + 2))
    A("s_cselect_b32 s12, s38, s40")
    A("s_cselect_b32 s13, s39, s41")
    A("s_cmp_eq_u32 %s, 2" % s(pre + 2))
    A("s_cselect_b32 s12, s36, s12")
    A("s_cselect_b32 s13, s37, s13")
    A("s_cmp_eq_u32 %s, 3" % s(pre + 2))
    A("s_cselect_b32 s12, s44, s12")
    A("s_cselect_b32 s13, s45, s13")
    A("s_movk_i32 s35, 8192")
    A("s_cselect_b32 s35, 9216, s35")
    A("s_mul_i32 s14, s35, 576")
    A("s_cselect_b64 vcc, -1, 0")
    A("v_cndmask_b32 v8, v3, v4, vcc")

def gemm1_dma(A, slot, sXo, sWo):
    last = None
    for j in range(8):
        A("s_add_u32 m0, s34, %d" % (slot * 65536 + j * 4096))
        A("s_add_u32 s31, %s, %d" % (s(sXo), j * 32 * 1152))
        last = A.vm("buffer_load_dwordx4 v2, s[8:11], s31 offen lds")
    for m in range(4):
        for j in range(2):
            rows = 4 * j + 16 * m
            A("s_add_u32 m0, s33, %d" % (slot * 65536 + 32768 + rows * 512))
            A("s_mul_i32 s31, s35, %d" % rows)
            A("s_add_u32 s31, s31, %s" % s(sWo))
            last = A.vm("buffer_load_dwordx4 v8, s[12:15], s31 offen lds")
    return last

def pstamp(A, on):
    if not on: return
    A("s_memtime s[90:91]")
    A("s_waitcnt lgkmcnt(0)")
    A("v_mov_b32 v250, s90")
    A("v_mov_b32 v251, s92")
    A("s_mov_b64 exec, 1")
    A("buffer_store_dword v250, v251, s[4:7], 0 offen")
    A("s_mov_b64 exec, -1")
    A("s_add_u32 s92, s92, 4")

def gemm1_body(A, next_task, done_label, publish=None, stf="", prof=False):
    CUR, NXT = 50, 56
    sXo, sWo, sK = 62, 63, 64
    def rd(setn, slot, ks, typ):
        for mt in range(8):
            A.ds("ds_read_b128 %s, %s offset:%d" % (v(FA[setn] + 4 * mt, 4), v(5 + ks), slot * 0 + mt * 2048))
    A.c("=========== GEMM1 persistent loop ===========")
    if prof:
        A("s_lshl_b32 s92, s2, 2")
        A("s_add_u32 s92, s92, s29")
        A("s_lshl_b32 s92, s92, 8")
        A("s_add_u32 s92, s92, %d" % WS_PROF)
    pstamp(A, prof)
    gemm1_decode(A, 48, NXT)
    gemm1_srd(A, NXT)
    def first_stages():
        A("s_mov_b32 %s, %s" % (s(sXo), s(NXT)))
        A("s_mov_b32 %s, %s" % (s(sWo), s(NXT + 1)))
        for st in range(2):
            gemm1_dma(A, st, sXo, sWo)
            A("s_add_u32 %s, %s, 128" % (s(sXo), s(sXo)))
            A("s_lshl_b32 s31, s35, 6")
            A("s_add_u32 %s, %s, s31" % (s(sWo), s(sWo)))
    first_stages()
    A("s_waitcnt vmcnt(16)")
    A.label("Lg1_task")
    for k in range(5):
        A("s_mov_b32 %s, %s" % (s(CUR + k), s(NXT + k)))
    A("s_cmp_eq_u32 %s, 1" % s(CUR + 2))
    A("s_cselect_b64 vcc, -1, 0")
    A("v_mov_b32 v32, v5")
    A("v_mov_b32 v33, v6")
    for nt in range(8):
        A("v_cndmask_b32 v%d, v%d, v%d, vcc" % (34 + nt, 24 + nt, 16 + nt))
    def reads(setn, ks):
        out = []
        for mt in range(8):
            out.append("ds_read_b128 %s, %s offset:%d" % (v(FA[setn] + 4 * mt, 4), v(32 + ks), mt * 2048))
        for nt in range(8):
            for x in range(2):
                out.append("ds_read_b64_tr_b16 %s, %s offset:%d" % (v(FB[setn] + 4 * nt + 2 * x, 2), v(34 + nt), ks * 16384 + x * 2048))
        return [out[0], out[8], out[9]] + out[10:24] + out[1:8]
    def flip():
        out = []
        for r in range(32, 42):
            out.append("v_xor_b32 v%d, 0x10000, v%d" % (r, r))
        return out
    def mm(setn, typ, first, fill):
        fill = list(fill)
        for mt in range(8):
            for nt in range(8):
                acc = a_((mt * 8 + nt) * 4, 4)
                x, w = v(FA[setn] + 4 * mt, 4), v(FB[setn] + 4 * nt, 4)
                a, b = (w, x) if typ == "T" else (x, w)
                A("v_mfma_f32_16x16x32_bf16 %s, %s, %s, %s" % (acc, a, b, "0" if first else acc))
                if fill:
                    f = fill.pop(0)
                    if callable(f): f()
                    else: A(f)
        assert not fill
    A("s_barrier")
    pstamp(A, prof)
    for r in reads(0, 0):
        A(r)
    A("s_mov_b32 %s, 0" % s(sK))
    A("s_cmp_eq_u32 %s, 1" % s(CUR + 2))
    A("s_cbranch_scc1 Lg1_N")
    for typ in ("T", "N"):
        L = "Lg1_" + typ
        A.label(L)
        A("s_waitcnt lgkmcnt(0)")
        mm(0, typ, True, reads(1, 1))
        A("s_branch %s_mid" % L)
        A.label(L + "_top")
        A("s_waitcnt lgkmcnt(0)")
        mm(0, typ, False, reads(1, 1))
        A.label(L + "_mid")
        A("s_cmp_eq_u32 %s, 8" % s(sK))
        A("s_cbranch_scc1 %s_last" % L)
        A("s_waitcnt vmcnt(0) lgkmcnt(0)")
        A("s_barrier")
        dm = Asm()
        A("s_and_b32 s32, %s, 1" % s(sK))
        A("s_lshl_b32 s32, s32, 16")
        A("s_add_u32 s65, s34, s32")
        A("s_add_u32 s66, s33, s32")
        A("s_cmp_ge_u32 %s, 7" % s(sK))
        A("s_cselect_b32 s67, %d, %s" % (OOB, s(sXo)))
        A("s_cselect_b32 s68, %d, %s" % (OOB, s(sWo)))
        base = flip() + reads(0, 0)
        dmas = []
        for j in range(8):
            def f(j=j):
                A("s_add_u32 m0, s65, %d" % (j * 4096))
                A("s_add_u32 s31, s67, %d" % (j * 32 * 1152))
                A("buffer_load_dwordx4 v2, s[8:11], s31 offen lds")
            dmas.append(f)
        for m in range(4):
            for j in range(2):
                def f(rows=4 * j + 16 * m):
                    A("s_add_u32 m0, s66, %d" % (32768 + rows * 512))
                    A("s_mul_i32 s31, s35, %d" % rows)
                    A("s_add_u32 s31, s31, s68")
                    A("buffer_load_dwordx4 v8, s[12:15], s31 offen lds")
                dmas.append(f)
        fill = []
        for k in range(64):
            if k % 4 == 0: fill.append(dmas.pop(0))
            elif base: fill.append(base.pop(0))
            else: fill.append(lambda: None)
        assert not base and not dmas
        mm(1, typ, False, fill)
        A("s_add_u32 %s, %s, 128" % (s(sXo), s(sXo)))
        A("s_lshl_b32 s31, s35, 6")
        A("s_add_u32 %s, %s, s31" % (s(sWo), s(sWo)))
        A("s_add_u32 %s, %s, 1" % (s(sK), s(sK)))
        A("s_branch %s_top" % L)
        A.label(L + "_last")
        A("s_waitcnt vmcnt(0) lgkmcnt(0)")
        A("s_barrier")
        mm(1, typ, False, [])
        A("s_branch Lg1_epi")
    A.label("Lg1_epi")
    pstamp(A, prof)
    next_task(A)
    A("s_cmp_ge_u32 s48, 528")
    A("s_cbranch_scc1 Lg1_nonext")
    gemm1_decode(A, 48, NXT)
    gemm1_srd(A, NXT)
    first_stages()
    A.label("Lg1_nonext")
    pstamp(A, prof)
    wm, wn = "s69", "s70"
    A("s_lshr_b32 s69, s29, 1")
    A("s_and_b32 s70, s29, 1")
    A("s_lshl_b32 s31, %s, 3" % s(CUR + 4))
    A("s_lshl_b32 s32, s69, 2")
    A("s_add_u32 s71, s31, s32")
    A("s_lshl_b32 s72, %s, 1" % s(CUR + 3))
    A("s_add_u32 s72, s72, s70")
    A("s_cmp_eq_u32 %s, 3" % s(CUR + 2))
    A("s_cbranch_scc1 Lg1_epiH")
    A("s_cmp_eq_u32 %s, 1" % s(CUR + 2))
    A("s_cbranch_scc1 Lg1_epiV")
    A("s_lshl_b32 s31, s71, 5")
    A("s_add_u32 s31, s31, s72")
    A("s_cmp_eq_u32 %s, 0" % s(CUR + 2))
    A("s_cselect_b32 s32, 14, 13")
    A("s_lshl_b32 s73, s31, s32")
    A("s_mov_b32 s31, %d" % WS_Q)
    A("s_cmp_eq_u32 %s, 0" % s(CUR + 2))
    A("s_cselect_b32 s31, %d, s31" % WS_KV)
    A("s_add_u32 s73, s73, s31")
    A("s_add_u32 s32, s32, 5")
    A("s_lshl_b32 s74, 1, s32")
    t = 192
    def pack(dst, ta, tb):
        for r in range(4):
            A("v_accvgpr_read_b32 v%d, a%d" % (t + r, ta * 4 + r))
        for r in range(4):
            A("v_accvgpr_read_b32 v%d, a%d" % (t + 4 + r, tb * 4 + r))
        for r in range(4):
            A("v_cvt_pk_bf16_f32 v%d, v%d, v%d" % (dst + r, t + 2 * r, t + 2 * r + 1))
    n = 0
    for mt in range(8):
        for p in range(4):
            dst = 200 + 4 * (n % 4); n += 1
            pack(dst, mt * 8 + 2 * p, mt * 8 + 2 * p + 1)
            if p == 0 and mt % 2 == 1:
                A("s_add_u32 s31, s73, 4096")
            A("buffer_store_dwordx4 %s, v1, s[4:7], %s offen offset:%d %s" % (v(dst, 4), "s73" if mt % 2 == 0 else "s31", p * 1024, stf))
        if mt % 2 == 1:
            A("s_add_u32 s73, s73, s74")
    A("s_branch Lg1_epi_done")
    A.label("Lg1_epiV")
    A("s_lshl_b32 s31, s71, 5")
    A("s_add_u32 s31, s31, s72")
    A("s_lshl_b32 s73, s31, 14")
    A("s_add_u32 s73, s73, %d" % (WS_KV + 8192))
    for sg in range(4):
        for nt in range(8):
            dst = 200 + 4 * (n % 4); n += 1
            pack(dst, (2 * sg) * 8 + nt, (2 * sg + 1) * 8 + nt)
            if nt == 4:
                A("s_add_u32 s31, s73, 4096")
            A("buffer_store_dwordx4 %s, v1, s[4:7], %s offen offset:%d %s" % (v(dst, 4), "s73" if nt < 4 else "s31", (nt % 4) * 1024, stf))
        A("s_add_u32 s73, s73, %d" % (32 * 16384))
    A("s_branch Lg1_epi_done")
    A.label("Lg1_epiH")
    A("s_lshl_b32 s31, s72, 8")
    for p in range(4):
        A("buffer_load_dwordx4 %s, v7, s[16:19], s31 offen offset:%d" % (v(200 + 4 * p, 4), p * 64))
    A("s_mul_i32 s73, s71, %d" % (2 * 144 * 1024))
    A("s_lshl_b32 s31, s72, 12")
    A("s_add_u32 s73, s73, s31")
    A("s_add_u32 s73, s73, %d" % WS_H)
    import math
    c1 = -2.0 * math.sqrt(2.0 / math.pi) * math.log2(math.e)
    A("s_mov_b32 s76, %s" % f32(c1 * 0.044715))
    A("s_mov_b32 s77, %s" % f32(c1 * 0.044715))
    A("v_mov_b32 v248, %s" % f32(c1))
    A("v_mov_b32 v249, %s" % f32(c1))
    A("s_waitcnt vmcnt(0)")
    for k in range(16):
        A("v_lshlrev_b32 v%d, 16, v%d" % (216 + 2 * k, 200 + k))
        A("v_and_b32 v%d, 0xffff0000, v%d" % (217 + 2 * k, 200 + k))
    u = 176
    for mt in range(8):
        for p in range(4):
            dst = 200 + 4 * (n % 4); n += 1
            ta, tb = mt * 8 + 2 * p, mt * 8 + 2 * p + 1
            for r in range(4):
                A("v_accvgpr_read_b32 v%d, a%d" % (t + r, ta * 4 + r))
            for r in range(4):
                A("v_accvgpr_read_b32 v%d, a%d" % (t + 4 + r, tb * 4 + r))
            for r in range(0, 8, 2):
                A("v_pk_add_f32 %s, %s, %s" % (v(t + r, 2), v(t + r, 2), v(216 + 8 * p + r, 2)))
            for r in range(0, 8, 2):
                A("v_pk_mul_f32 %s, %s, %s" % (v(u + r, 2), v(t + r, 2), v(t + r, 2)))
            for r in range(0, 8, 2):
                A("v_pk_fma_f32 %s, %s, s[76:77], v[248:249]" % (v(u + r, 2), v(u + r, 2)))
            for r in range(0, 8, 2):
                A("v_pk_mul_f32 %s, %s, %s" % (v(u + r, 2), v(u + r, 2), v(t + r, 2)))
            for r in range(8):
                A("v_exp_f32 v%d, v%d" % (u + r, u + r))
            for r in range(0, 8, 2):
                A("v_pk_add_f32 %s, %s, 1.0 op_sel_hi:[1,0]" % (v(u + r, 2), v(u + r, 2)))
            for r in range(8):
                A("v_rcp_f32 v%d, v%d" % (u + r, u + r))
            for r in range(0, 8, 2):
                A("v_pk_mul_f32 %s, %s, %s" % (v(t + r, 2), v(t + r, 2), v(u + r, 2)))
            for r in range(4):
                A("v_cvt_pk_bf16_f32 v%d, v%d, v%d" % (dst + r, t + 2 * r, t + 2 * r + 1))
            A("buffer_store_dwordx4 %s, v1, s[4:7], s73 offen offset:%d %s" % (v(dst, 4), p * 1024, stf))
        A("s_add_u32 s73, s73, %d" % (144 * 1024))
    A.label("Lg1_epi_done")
    pstamp(A, prof)
    if publish:
        publish(A, CUR)
    A("s_cmp_ge_u32 s48, 528")
    A("s_cbranch_scc1 %s" % done_label)
    A("s_waitcnt vmcnt(48)")
    A("s_branch Lg1_task")


KD = """
.amdhsa_kernel %s
  .amdhsa_next_free_vgpr 512
  .amdhsa_next_free_sgpr 102
  .amdhsa_accum_offset 256
  .amdhsa_group_segment_fixed_size 0
  .amdhsa_kernarg_size 128
  .amdhsa_user_sgpr_count 2
  .amdhsa_user_sgpr_kernarg_segment_ptr 1
  .amdhsa_system_sgpr_workgroup_id_x 1
.end_amdhsa_kernel
"""
def kernel_head(A, name):
    A.lines.append(".globl %s\n.p2align 8\n.type %s,@function\n%s:" % (name, name, name))
def ws_srd(A):
    A("s_load_dwordx4 s[20:23], s[0:1], 112")
    A("s_waitcnt lgkmcnt(0)")
    A("s_mov_b32 s4, s22")
    A("s_mov_b32 s5, s23")
    A("s_mov_b32 s6, %d" % WS_BYTES)
    A("s_mov_b32 s7, 0x00020000")
    A("s_mov_b32 s22, 256")
    A("s_mov_b32 s23, 0x00020000")

def gemm1_kernel(A, prof=False):
    kernel_head(A, "gemm1_kernel")
    A("s_cmp_ge_u32 s2, 256")
    A("s_cbranch_scc1 Lg1_exit")
    ws_srd(A)
    gemm1_setup(A)
    A("s_and_b32 s31, s2, 7")
    A("s_lshr_b32 s32, s2, 6")
    A("s_lshl_b32 s32, s32, 3")
    A("s_add_u32 s31, s31, s32")
    A("s_lshl_b32 s31, s31, 3")
    A("s_bfe_u32 s32, s2, 0x30003")
    A("s_add_u32 s48, s31, s32")
    def nxt(A):
        A("s_add_u32 s48, s48, 256")
    gemm1_body(A, nxt, "Lg1_exit", prof=prof)
    A.label("Lg1_exit")
    A("s_endpgm")

if __name__ == "__main__":
    import sys
    A = Asm()
    gemm1_kernel(A, prof=len(sys.argv) > 1)
    txt = """; @launch kernel=gemm1_kernel grid=(256,1,1) block=(256,1,1) lds=163840
.amdgcn_target "amdgcn-amd-amdhsa--gfx950"
.text
""" + A.text() + '.section .rodata,"a"\n.p2align 6\n' + KD % "gemm1_kernel"
    open("gemm1.s", "w").write(txt)
```

```python
from asmlib import *
from layout import *
from gen_gemm1 import f32, kernel_head, ws_srd, KD
import math

def t2_role(A, sRole, wait_inputs=None, wait_chain=None, wait_base=None, ldf="sc1", exit_label="Lt2_exit"):
    A.c("=========== T2 role ===========")
    A("s_load_dwordx2 s[12:13], s[0:1], 40")
    A("s_load_dwordx2 s[16:17], s[0:1], 104")
    A("v_lshrrev_b32 v1, 6, v0")
    A("s_nop 0")
    A("v_readfirstlane_b32 s29, v1")
    A("v_and_b32 v1, 63, v0")
    A("s_mul_i32 s30, %s, 171" % s(sRole))
    A("s_lshr_b32 s30, s30, 10")
    A("s_mul_i32 s31, s30, 6")
    A("s_sub_u32 s31, %s, s31" % s(sRole))
    A("s_lshr_b32 s36, s30, 3")
    A("s_and_b32 s30, s30, 7")
    A("s_lshl_b32 s37, s30, 2")
    A("s_add_u32 s37, s37, s29")
    A("s_waitcnt lgkmcnt(0)")
    A("s_mov_b32 s14, %d" % (4096 * 1152))
    A("s_mov_b32 s15, 0x00020000")
    A("s_mov_b32 s18, %d" % (2048 * 1152))
    A("s_mov_b32 s19, 0x00020000")
    for i in range(3):
        A("v_add_u32 v8, %d, v1" % (64 * i))
        A("v_mul_u32_u24 v9, 171, v8")
        A("v_lshrrev_b32 v9, 11, v9")
        A("v_mul_u32_u24 v10, 12, v9")
        A("v_sub_u32 v10, v8, v10")
        A("v_mul_u32_u24 v9, 1152, v9")
        A("v_lshl_add_u32 v%d, v10, 4, v9" % (2 + i))
    A("s_mul_i32 s32, s29, 24576")
    A("s_mul_i32 s33, s37, 147456")
    A("s_mul_i32 s34, s31, 192")
    A("s_add_u32 s33, s33, s34")
    for b in range(8):
        for i in range(3):
            A("s_add_u32 m0, s32, %d" % (b * 3072 + i * 1024))
            A("s_add_u32 s34, s33, %d" % (b * 16 * 1152))
            A("buffer_load_dwordx4 v%d, s[12:15], s34 offen lds" % (2 + i))
    A("v_lshrrev_b32 v9, 4, v1")
    A("v_bfe_u32 v10, v1, 2, 2")
    A("v_and_b32 v11, 3, v1")
    A("v_lshl_add_u32 v12, v9, 2, v10")
    A("v_mul_u32_u24 v12, 192, v12")
    A("v_lshl_add_u32 v12, v11, 4, v12")
    A("v_add_u32 v8, s32, v12")
    A("v_lshl_add_u32 v12, v9, 3, v10")
    A("v_lshlrev_b32 v12, 4, v12")
    A("v_and_b32 v13, 1, v1")
    A("v_lshl_add_u32 v12, v13, 3, v12")
    A("s_waitcnt vmcnt(0)")
    A("v_add_u32 v2, s32, v12")
    for ks in range(4):
        for nt in range(6):
            for x in range(2):
                A("ds_read_b64_tr_b16 %s, v8 offset:%d" % (a_((ks * 6 + nt) * 4 + 2 * x, 2), (32 * ks + 16 * x) * 192 + (nt // 2) * 64 + (nt % 2) * 8))
        A("s_waitcnt lgkmcnt(0)")
    A("v_and_b32 v12, 15, v1")
    for r in range(4):
        A("v_lshl_add_u32 v13, v9, 2, %d" % r)
        A("v_cmp_le_u32 %s, v13, v12" % s(50 + 2 * r, 2))
    A("v_mul_u32_u24 v3, 1152, v12")
    A("v_lshl_add_u32 v3, v9, 4, v3")
    A("v_lshlrev_b32 v4, 2, v12")
    A("v_lshlrev_b32 v1, 4, v1")
    A("v_mov_b32 v6, 0x3f803f80")
    A("v_mov_b32 v7, 0x3f803f80")
    A("v_mov_b32 v8, 0x3f003f00")
    A("v_mov_b32 v9, 0x3f003f00")
    A("v_mov_b32 v5, 0xff800000")
    A("s_mov_b32 s42, 0x3e0293ee")
    A("s_barrier")
    QF, KF, VF, KM, VM = 64, 96, 128, 160, 176
    S, P, OT, OF, LS = 192, 204, 212, 16, 244
    ACC = 96
    def mf(acc, a, b, first):
        A("v_mfma_f32_16x16x32_bf16 %s, %s, %s, %s" % (reg(acc, 4), reg(a, 4), reg(b, 4), "0" if first else reg(acc, 4)))
    def mf16(acc, a, b, first):
        A("v_mfma_f32_16x16x16_bf16 %s, %s, %s, %s" % (reg(acc, 4), reg(a, 2), reg(b, 2), "0" if first else reg(acc, 4)))
    def cv(dst, base):
        A("v_cvt_pk_bf16_f32 %s, %s, %s" % (v(dst), v(base), v(base + 1)))
        A("v_cvt_pk_bf16_f32 %s, %s, %s" % (v(dst + 1), v(base + 2), v(base + 3)))
    A.label("Lt2_seg")
    if wait_inputs: wait_inputs(A)
    A("s_lshl_b32 s33, s36, 5")
    A("s_add_u32 s33, s33, s37")
    A("s_lshl_b32 s34, s33, 13")
    A("s_add_u32 s35, s34, %d" % WS_KVM)
    A("s_add_u32 s34, s34, %d" % WS_Q)
    A("s_lshl_b32 s33, s33, 14")
    A("s_add_u32 s33, s33, %d" % WS_KV)
    for j in range(8):
        if j == 4: A("s_add_u32 s34, s34, 4096")
        A("buffer_load_dwordx4 %s, v1, s[4:7], s34 offen offset:%d %s" % (v(QF + 4 * j, 4), (j % 4) * 1024, ldf))
    for j in range(16):
        if j and j % 4 == 0: A("s_add_u32 s33, s33, 4096")
        A("buffer_load_dwordx4 %s, v1, s[4:7], s33 offen offset:%d %s" % (v(KF + 4 * j, 4), (j % 4) * 1024, ldf))
    if wait_chain: wait_chain(A)
    for j in range(2):
        A("buffer_load_dwordx4 %s, v1, s[4:7], s35 offen offset:%d %s" % (v(OT + 4 * j, 4), j * 1024, ldf))
    A("s_add_u32 s35, s35, 2048")
    for j in range(4):
        A("buffer_load_dwordx4 %s, v1, s[4:7], s35 offen offset:%d %s" % (v(VM + 4 * j, 4), j * 1024, ldf))
    A("v_add_u32 v10, s32, v1")
    A("s_waitcnt vmcnt(4)")
    for j in range(2):
        A("ds_write_b128 v10, %s offset:%d" % (v(OT + 4 * j, 4), j * 1024))
    A("s_waitcnt lgkmcnt(0)")
    for ks in range(4):
        for x in range(2):
            A("ds_read_b64_tr_b16 %s, v2 offset:%d" % (v(KM + 4 * ks + 2 * x, 2), ks * 512 + x * 64))
    A("s_waitcnt vmcnt(0) lgkmcnt(0)")
    for qt in range(2):
        SM, SX0, SX1 = S, S + 4, S + 8
        for ks in range(4):
            mf(SM, KM + 4 * ks, QF + 16 * qt + 4 * ks, ks == 0)
            mf(SX0, KF + 4 * ks, QF + 16 * qt + 4 * ks, ks == 0)
            if qt == 1:
                mf(SX1, KF + 16 + 4 * ks, QF + 16 * qt + 4 * ks, ks == 0)
        A("s_nop 7")
        diag = SX0 if qt == 0 else SX1
        for r in range(4):
            A("v_cndmask_b32 %s, v5, %s, %s" % (v(diag + r), v(diag + r), s(50 + 2 * r, 2)))
        m, m2 = 10, 11
        A("v_max3_f32 v10, %s, %s, %s" % (v(SM), v(SM + 1), v(SM + 2)))
        A("v_max3_f32 v10, v10, %s, %s" % (v(SM + 3), v(SX0)))
        A("v_max3_f32 v10, v10, %s, %s" % (v(SX0 + 1), v(SX0 + 2)))
        if qt == 1:
            A("v_max3_f32 v10, v10, %s, %s" % (v(SX1), v(SX1 + 1)))
            A("v_max3_f32 v10, v10, %s, %s" % (v(SX1 + 2), v(SX1 + 3)))
        A("v_max_f32 v10, v10, %s" % v(SX0 + 3))
        for sw in ("v_permlane32_swap_b32", "v_permlane16_swap_b32"):
            A("v_mov_b32 v11, v10")
            A("s_nop 1")
            A("%s v10, v11" % sw)
            A("v_max_f32 v10, v10, v11")
        A("v_mul_f32 v10, s42, v10")
        n = 12 if qt == 1 else 8
        for r in range(0, n, 2):
            A("v_pk_fma_f32 %s, %s, s[42:43], v[10:11] op_sel_hi:[1,0,0] neg_lo:[0,0,1] neg_hi:[0,0,1]" % (v(S + r, 2), v(S + r, 2)))
        for r in range(n):
            A("v_exp_f32 %s, %s" % (v(S + r), v(S + r)))
        PX, PM = P, P + 4
        cv(PM, SM)
        cv(PX, SX0)
        if qt == 1:
            cv(PX + 2, SX1)
        A("s_nop 1")
        mf16(LS, 8, PM, True)
        mf16(LS, 6, PX, False)
        if qt == 1:
            mf16(LS, 6, PX + 2, False)
        for et in range(8):
            mf16(OT + 4 * et, VM + 2 * et, PM, True)
        for et in range(8):
            if qt == 1: mf(OT + 4 * et, VF + 4 * et, PX, False)
            else: mf16(OT + 4 * et, VF + 4 * et, PX, False)
        A("v_rcp_f32 %s, %s" % (v(LS), v(LS)))
        A("s_nop 4")
        for r in range(0, 32, 2):
            A("v_pk_mul_f32 %s, %s, %s op_sel_hi:[1,0]" % (v(OT + r, 2), v(OT + r, 2), v(LS, 2)))
        for et in range(8):
            cv(OF + 2 * et, OT + 4 * et)
        A("s_nop 1")
        for ks in range(4):
            for nt in range(6):
                mf(256 + ACC + (qt * 6 + nt) * 4, 256 + (ks * 6 + nt) * 4, OF + 4 * ks, ks == 0)
    A("s_mul_i32 s33, s29, 12288")
    A("s_add_u32 s33, s33, 98304")
    A("v_add_u32 v10, s33, v1")
    A("s_nop 4")
    for k in range(12):
        A("ds_write_b128 v10, %s offset:%d" % (a_(ACC + 4 * k, 4), k * 1024))
    A("s_mul_i32 s33, s29, 3072")
    A("s_add_u32 s34, s33, 98304")
    A("v_add_u32 v10, s34, v1")
    A("s_waitcnt lgkmcnt(0)")
    A("s_barrier")
    R = 64
    for sw in range(4):
        for k in range(3):
            A("ds_read_b128 %s, v10 offset:%d" % (v(R + 12 * sw + 4 * k, 4), sw * 12288 + k * 1024))
    A("s_mul_i32 s34, s36, 6")
    A("s_add_u32 s34, s34, s31")
    A("s_mul_i32 s35, s34, %d" % (8 * 12288))
    A("s_add_u32 s35, s35, %d" % WS_PART)
    A("s_mul_i32 s38, s30, 12288")
    A("s_add_u32 s38, s38, s35")
    A("s_add_u32 s38, s38, s33")
    A("s_waitcnt lgkmcnt(0)")
    for r in range(0, 12, 2):
        A("v_pk_add_f32 %s, %s, %s" % (v(R + r, 2), v(R + r, 2), v(R + 12 + r, 2)))
        A("v_pk_add_f32 %s, %s, %s" % (v(R + 24 + r, 2), v(R + 24 + r, 2), v(R + 36 + r, 2)))
        A("v_pk_add_f32 %s, %s, %s" % (v(R + r, 2), v(R + r, 2), v(R + 24 + r, 2)))
    for k in range(3):
        A("buffer_store_dwordx4 %s, v1, s[4:7], s38 offen offset:%d sc1" % (v(R + 4 * k, 4), k * 1024))
    A("s_waitcnt vmcnt(0)")
    A("s_barrier")
    A("s_lshl_b32 s34, s34, 7")
    A("s_add_u32 s34, s34, %d" % (WS_FLAG + F_T2 * 128))
    A("v_mov_b32 v10, 1")
    A("v_mov_b32 v11, 0")
    A("v_mov_b32 v12, 98304")
    lsk = A.newlabel("Lt2sk")
    A("s_cmp_lg_u32 s29, 0")
    A("s_cbranch_scc1 %s" % lsk)
    A("s_mov_b64 exec, 1")
    A("buffer_atomic_add v10, v11, s[4:7], s34 offen sc0")
    A("s_waitcnt vmcnt(0)")
    A("ds_write_b32 v12, v10")
    A("s_waitcnt lgkmcnt(0)")
    A("s_mov_b64 exec, -1")
    A.label(lsk)
    A("s_barrier")
    A("ds_read_b32 v10, v12")
    A("s_waitcnt lgkmcnt(0)")
    A("v_readfirstlane_b32 s39, v10")
    A("s_barrier")
    lnext = A.newlabel("Lt2next")
    A("s_cmp_lg_u32 s39, 7")
    A("s_cbranch_scc1 %s" % lnext)
    A("s_cmp_eq_u32 s29, 3")
    A("s_cbranch_scc1 %s" % lnext)
    if wait_base: wait_base(A)
    A("s_lshl_b32 s33, s29, 11")
    A("s_add_u32 s35, s35, s33")
    for hg in range(8):
        for qt in range(2):
            A("s_add_u32 s33, s35, %d" % (hg * 12288 + qt * 6144))
            for hf in range(2):
                A("buffer_load_dwordx4 %s, v1, s[4:7], s33 offen offset:%d sc1" % (v(R + hg * 16 + qt * 8 + hf * 4, 4), hf * 1024))
    B = 192
    for qt in range(2):
        A("s_lshl_b32 s33, s36, 1")
        A("s_add_u32 s33, s33, %d" % qt)
        A("s_lshl_b32 s34, s33, 6")
        A("s_add_u32 s34, s34, %d" % WS_G)
        A("buffer_load_dword %s, v4, s[4:7], s34 offen %s" % (v(B + 16 + 2 * qt), ldf))
        A("s_mul_i32 s33, s33, 6")
        A("s_add_u32 s33, s33, s31")
        A("s_mul_i32 s33, s33, 6144")
        A("s_lshl_b32 s34, s29, 11")
        A("s_add_u32 s33, s33, s34")
        A("s_add_u32 s33, s33, %d" % WS_BASE)
        for hf in range(2):
            A("buffer_load_dwordx4 %s, v1, s[4:7], s33 offen offset:%d %s" % (v(B + qt * 8 + hf * 4, 4), hf * 1024, ldf))
    A("s_waitcnt vmcnt(0)")
    for st in (64, 32, 16):
        for r in range(0, st, 2):
            A("v_pk_add_f32 %s, %s, %s" % (v(R + r, 2), v(R + r, 2), v(R + st + r, 2)))
    for qt in range(2):
        for r in range(0, 8, 2):
            A("v_pk_fma_f32 %s, %s, %s, %s op_sel_hi:[1,0,1]" % (v(R + 8 * qt + r, 2), v(R + 8 * qt + r, 2), v(B + 16 + 2 * qt, 2), v(B + 8 * qt + r, 2)))
        for r in range(4):
            A("v_cvt_pk_bf16_f32 %s, %s, %s" % (v(R + 32 + 4 * qt + r), v(R + 8 * qt + 2 * r), v(R + 8 * qt + 2 * r + 1)))
        A("s_mul_i32 s33, s36, %d" % (32 * 1152))
        A("s_mul_i32 s34, s31, 192")
        A("s_add_u32 s33, s33, s34")
        A("s_lshl_b32 s34, s29, 6")
        A("s_add_u32 s33, s33, s34")
        A("s_add_u32 s33, s33, %d" % (qt * 16 * 1152))
        A("buffer_store_dwordx4 %s, v3, s[16:19], s33 offen" % v(R + 32 + 4 * qt, 4))
    A.label(lnext)
    A("s_add_u32 s36, s36, 4")
    A("s_cmp_lt_u32 s36, 64")
    A("s_cbranch_scc1 Lt2_seg")

def t2_kernel(A):
    kernel_head(A, "t2_kernel")
    A("s_cmp_ge_u32 s2, 192")
    A("s_cbranch_scc1 Lt2_exit")
    ws_srd(A)
    A("s_and_b32 s48, s2, 7")
    A("s_mul_i32 s48, s48, 24")
    A("s_lshr_b32 s49, s2, 3")
    A("s_add_u32 s48, s48, s49")
    t2_role(A, 48)
    A.label("Lt2_exit")
    A("s_endpgm")
```

```python
WS_BYTES = 0x10000000
WS_IN1 = 0x100000
IN1_SLOT = 72 * 4096
WS_IN2 = 0x200000
IN2_SLOT = 16384
WS_PROF = 0x300000
WS_KV = 0x1000000
WS_Q = 0x3000000
WS_KVM = 0x4000000
WS_H = 0x5000000
WS_O = 0x6400000
WS_B = 0x7400000
OOB = 0x7ff00000
WS_BASE = 0x7400000
WS_G = 0x7900000
WS_PART = 0x8000000
WS_FLAG = 0x10000
F_T2 = 64
N_FLAGS = 512
```

```python
from asmlib import *
from layout import *
import gen_gemm1, gen_ffn2, gen_t2, gen_chain3
from gen_gemm1 import kernel_head, ws_srd, KD
A = Asm()
gen_gemm1.gemm1_kernel(A)
gen_ffn2.ffn2_kernel(A)
gen_t2.t2_kernel(A)
kernel_head(A, "init_kernel")
A("s_cmp_ge_u32 s2, 16")
A("s_cbranch_scc1 Linit_exit")
ws_srd(A)
A("v_lshlrev_b32 v1, 4, v0")
A("s_lshl_b32 s30, s2, 12")
A("s_add_u32 s30, s30, %d" % WS_FLAG)
for r in range(4): A("v_mov_b32 v%d, 0" % (4 + r))
A("buffer_store_dwordx4 v[4:7], v1, s[4:7], s30 offen")
A.label("Linit_exit")
A("s_endpgm")
ch = gen_chain3.standalone(False, tot=False)
body = ch[ch.index(".globl chain_kernel"):ch.index('.section .rodata')]
hdr = open("gated_mix__memory_aug_recurrent_mem_tr__dense_activation_gelu__prompt.s.ref").read()
hdr = hdr[:hdr.index("; Override launch")]
txt = hdr + """; @launch kernel=init_kernel grid=(16,1,1) block=(256,1,1) lds=0
; @launch kernel=gemm1_kernel grid=(256,1,1) block=(256,1,1) lds=163840
; @launch kernel=ffn2_kernel grid=(192,1,1) block=(256,1,1) lds=163840
; @launch kernel=chain_kernel grid=(256,1,1) block=(256,1,1) lds=163840
; @launch kernel=t2_kernel grid=(192,1,1) block=(256,1,1) lds=163840
.amdgcn_target "amdgcn-amd-amdhsa--gfx950"
.text
""" + A.text() + body + '.section .rodata,"a"\n' + "".join(".p2align 6" + KD % n for n in ("init_kernel", "gemm1_kernel", "ffn2_kernel", "chain_kernel", "t2_kernel"))
open("multi.s", "w").write(txt)
```

```python
from asmlib import *
from layout import *

X0 = 65536
L_KX = X0
L_VX = X0 + 8192
L_MEM = X0 + 16384
L_O = L_MEM
L_QK = L_MEM + 9216
L_SEL = L_QK + 4096
L_CST = L_SEL + 1024
L_DUMMY = L_CST + 256
assert L_DUMMY + 256 <= X0 + 32768
SPIN_MAX = 1 << 20

def gen_chain(A, prof=False, nsteps=64, tot=False, d1=0, d2=0, X=(), merged=True):
    st_flags = "sc1"
    WS, WQK, WV, WO, DBG, M0S = 4, 8, 12, 16, 20, 24
    sH, sW, sStep, sT, sT2, sSpin = 28, 29, 30, 31, 32, 33
    sIn1R, sIn2W, sIn2R, sIn2Z, sKV, sPub, sUnit, sIn1Z, sC = 34, 35, 36, 37, 38, 39, 40, 41, 42
    sWarm, sPubV, sH2, sM0, sU2, sAll, sFl = 53, 63, 70, 71, 43, 95, 93
    sOne = 88
    sSt = 48
    sAo = 54
    sOo = 64
    sW2k = 68
    sUo = 69
    sPT = 72
    vIdx, vLX, vLW, vLW2, vEw, vQKr, vOrH, vP1, vOb, vA = range(10)
    vP2 = 31
    sSlow = 94
    sfx = ['']
    VA1 = 12
    AR = [16, 20, 24]
    T = [28, 32, 36, 40]
    TB = 44
    VA0 = 60
    VA = [VA0, VA1]
    nstamp = [0]
    ncut = [0]
    def stamp():
        ncut[0] += 1
        if ("cut%d" % (ncut[0] - 1)) in X:
            A("s_add_u32 %s, %s, 1" % (s(sStep), s(sStep)))
            A("s_mov_b32 m0, %s" % s(sM0))
            A("s_nop 7")
            for gi in range(3):
                A("v_add_u32 %s, %s, %s" % (v([vA, 10, 11][gi]), s(sAo + 3 * gi), v(vLX)))
            A("v_lshlrev_b32 %s, 2, %s" % (v(VA0), v(vLX)))
            A("s_waitcnt lgkmcnt(0)")
            A("s_cmp_lt_u32 %s, 63" % s(sStep))
            A("s_cbranch_scc1 Lstep" + sfx[0])
            A("s_branch Lfin")
        if prof:
            A("s_memtime %s" % s(sPT + 2 * nstamp[0], 2))
            nstamp[0] += 1

    A.c("================= chain role =================")
    if tot:
        A("s_memtime s[98:99]")
    A("s_mov_b32 %s, s27" % s(sSlow))
    A("s_load_dwordx2 s[24:25], s[0:1], 8")
    A("s_load_dwordx4 s[44:47], s[0:1], 16")
    A("s_load_dwordx2 s[12:13], s[0:1], 32")
    A("s_load_dwordx2 s[16:17], s[0:1], 40")
    vLane = 27
    A("v_lshrrev_b32 v1, 6, v0")
    A("s_nop 0")
    A("v_readfirstlane_b32 %s, v1" % s(sW))
    A("v_and_b32 %s, 63, v0" % v(vLane))
    A("s_waitcnt lgkmcnt(0)")
    A("s_cmp_lt_u32 %s, 2" % s(sW))
    A("s_cselect_b32 s8, s44, s46")
    A("s_cselect_b32 s9, s45, s47")
    for b, n in ((WQK, 576 * 8192), (WV, 576 * 8192), (WO, 4096 * 1152), (M0S, 9216)):
        A("s_mov_b32 %s, %d" % (s(b + 2), n))
        A("s_mov_b32 %s, 0x00020000" % s(b + 3))
    L = v(vLane)
    t0, t1, t2, t3 = v(16), v(17), v(18), v(19)
    A("v_and_b32 %s, 15, %s" % (t0, L))
    A("v_lshrrev_b32 %s, 4, %s" % (t1, L))
    A("v_and_b32 %s, 8, %s" % (t2, L))
    A("v_mov_b32 %s, 0x4444" % v(vIdx))
    A("v_mov_b32 %s, 0xeeee" % t3)
    A("v_cmp_ne_u32 vcc, 0, %s" % t2)
    A("s_nop 1")
    A("v_cndmask_b32 %s, %s, %s, vcc" % (v(vIdx), v(vIdx), t3))
    A("v_lshlrev_b32 %s, 4, %s" % (t2, L))
    A("v_add_u32 %s, %d, %s" % (v(vLX), X0, t2))
    A("s_lshl_b32 %s, %s, 12" % (s(sT), s(sW)))
    A("v_add_u32 %s, %s, %s" % (v(vLW), s(sT), t2))
    A("v_add_u32 %s, 98304, %s" % (v(vLW2), v(vLW)))
    A("v_and_b32 %s, 7, %s" % (t2, L))
    A("v_lshl_add_u32 %s, %s, 3, %s" % (t2, t1, t2))
    A("v_lshlrev_b32 %s, 4, %s" % (t2, t2))
    A("v_add_u32 %s, %d, %s" % (v(vOb), L_O, t2))
    A("v_bfe_u32 %s, %s, 3, 1" % (t3, L))
    A("v_lshl_add_u32 %s, %s, 9, %s" % (v(vOrH), t3, v(vOb)))
    A("v_lshrrev_b32 %s, 1, %s" % (t2, t1))
    A("v_lshl_add_u32 %s, %s, 4, %s" % (t2, t2, t0))
    A("v_lshlrev_b32 %s, 4, %s" % (t2, t2))
    A("v_and_b32 %s, 1, %s" % (t3, t1))
    A("v_lshl_add_u32 %s, %s, 3, %s" % (t2, t3, t2))
    A("s_lshl_b32 %s, %s, 10" % (s(sT), s(sW)))
    A("s_add_u32 %s, %s, %d" % (s(sT), s(sT), X0))
    A("v_add_u32 %s, %s, %s" % (v(vEw), s(sT), t2))
    A("v_lshrrev_b32 %s, 2, %s" % (t2, t0))
    A("v_lshl_add_u32 %s, %s, 3, %s" % (t2, t1, t2))
    A("v_lshlrev_b32 %s, 4, %s" % (t2, t2))
    A("v_and_b32 %s, 1, %s" % (t3, L))
    A("v_lshl_add_u32 %s, %s, 3, %s" % (t2, t3, t2))
    A("v_add_u32 %s, %d, %s" % (v(vQKr), L_QK, t2))
    A("v_bfe_u32 %s, %s, 3, 1" % (t3, L))
    A("v_lshrrev_b32 %s, 1, %s" % (t2, t1))
    A("v_lshlrev_b32 %s, 1, %s" % (t2, t2))
    A("v_add_u32 %s, %s, %s" % (t2, t2, t3))
    A("v_lshlrev_b32 %s, 12, %s" % (t2, t2))
    A("v_and_b32 %s, 7, %s" % (t3, L))
    A("v_lshl_add_u32 %s, %s, 4, %s" % (t2, t3, t2))
    A("v_and_b32 %s, 1, %s" % (t3, t1))
    A("v_lshl_add_u32 %s, %s, 3, %s" % (t2, t3, t2))
    A("s_mul_i32 %s, %s, %d" % (s(sT), s(sW), 18 * 4096))
    A("s_lshl_b32 %s, %s, 7" % (s(sT2), s(sH)))
    A("s_add_u32 %s, %s, %s" % (s(sT), s(sT), s(sT2)))
    A("v_add_u32 %s, %s, %s" % (v(vP1), s(sT), t2))
    A("s_lshl_b32 %s, %s, 5" % (s(sUnit), s(sW)))
    A("s_add_u32 %s, %s, %s" % (s(sUnit), s(sUnit), s(sH)))
    A("v_lshlrev_b32 %s, 4, %s" % (t2, t0))
    A("v_and_b32 %s, 1, %s" % (t3, t1))
    A("v_lshl_add_u32 %s, %s, 3, %s" % (t2, t3, t2))
    A("v_lshrrev_b32 %s, 1, %s" % (t3, t1))
    A("v_lshl_add_u32 %s, %s, 2, %s" % (t2, t3, t2))
    A("s_lshl_b32 %s, %s, 7" % (s(sT), s(sUnit)))
    A("s_lshl_b32 %s, %s, 12" % (s(sUo), s(sUnit)))
    A("s_sub_u32 %s, %s, %d" % (s(sUo), s(sUo), X0))
    A("s_cmp_lt_u32 %s, 72" % s(sUnit))
    A("s_cselect_b32 %s, %s, %d" % (s(sU2), s(sT), OOB))
    A("s_cselect_b32 %s, %s, %d" % (s(sUo), s(sUo), OOB))
    A("v_mov_b32 %s, %d" % (t3, OOB))
    A("v_cmp_gt_u32 vcc, 8, %s" % t0)
    A("s_nop 1")
    A("v_cndmask_b32 %s, %s, %s, vcc" % (v(vP2), t3, t2))
    A("s_mov_b32 %s, 0x3e0293ee" % s(sC))
    A("s_lshl_b32 %s, %s, 11" % (s(sW2k), s(sW)))
    for j in range(9):
        A("s_add_u32 %s, %s, %d" % (s(sT), s(sW), j // 3))
        A("s_sub_u32 %s, %s, 3" % (s(sT2), s(sT)))
        A("s_cmp_ge_u32 %s, 3" % s(sT))
        A("s_cselect_b32 %s, %s, %s" % (s(sT), s(sT2), s(sT)))
        A("s_mul_i32 %s, %s, 3072" % (s(sT), s(sT)))
        A("s_add_u32 %s, %s, %d" % (s(sAo + j), s(sT), (j % 3) * 1024))
    for j in range(4):
        A("s_add_u32 %s, %s, %d" % (s(sT), s(sW), j))
        A("s_and_b32 %s, %s, 3" % (s(sT), s(sT)))
        A("s_lshl_b32 %s, %s, 9" % (s(sOo + j), s(sT)))

    for r in range(4):
        A("v_mov_b32 %s, -1" % v(20 + r))
    for slot in range(2):
        A("s_add_u32 %s, %s, %d" % (s(sT), s(sUo), WS_IN1 + slot * IN1_SLOT))
        for j in range(4):
            A("buffer_store_dwordx4 v[20:23], %s, %s, %s offen offset:%d %s" % (v(vLX), s(WS, 4), s(sT), j * 1024, st_flags))
    for slot in range(4):
        A("s_add_u32 %s, %s, %d" % (s(sT), s(sU2), WS_IN2 + slot * IN2_SLOT))
        A("buffer_store_dword v20, %s, %s, %s offen %s" % (v(vP2), s(WS, 4), s(sT), st_flags))
    for r in range(4):
        A("v_mov_b32 %s, 0" % v(32 + r))
    A("s_lshl_b32 %s, %s, 12" % (s(sT), s(sH)))
    A("s_lshl_b32 %s, %s, 10" % (s(sT2), s(sW)))
    A("s_add_u32 %s, %s, %s" % (s(sT), s(sT), s(sT2)))
    A("s_add_u32 %s, %s, %d" % (s(sT), s(sT), WS_FLAG - X0))
    A("buffer_store_dwordx4 v[32:35], %s, %s, %s offen sc1" % (v(vLX), s(WS, 4), s(sT)))
    A("s_waitcnt vmcnt(0)")
    A("s_barrier")
    lab_na = A.newlabel("Lnoarr")
    A("s_cmp_lg_u32 %s, 0" % s(sW))
    A("s_cbranch_scc1 %s" % lab_na)
    A("s_add_u32 %s, %s, 1" % (s(sT), s(sSlow)))
    A("v_mov_b32 v20, %s" % s(sT))
    A("v_mov_b32 v21, %d" % DBG_ARR)
    A("s_mov_b64 exec, 1")
    A("buffer_atomic_add v20, v21, %s, 0 offen" % s(DBG, 4))
    A("s_mov_b64 exec, -1")
    A.label(lab_na)

    vOffQ, vOffO, vOffS, vTrH, vTrP, vTrS, vTa = 20, 21, 22, 23, 24, 25, 26
    TMP = 32
    A("v_lshrrev_b32 %s, 2, %s" % (t2, L))
    A("v_and_b32 %s, 3, %s" % (t3, L))
    A("v_lshlrev_b32 %s, 13, %s" % (v(vOffQ), t2))
    A("v_lshl_add_u32 %s, %s, 4, %s" % (v(vOffQ), t3, v(vOffQ)))
    A("v_mul_u32_u24 %s, 1152, %s" % (v(vOffO), t2))
    A("v_lshl_add_u32 %s, %s, 4, %s" % (v(vOffO), t3, v(vOffO)))
    A("v_lshrrev_b32 %s, 1, %s" % (t2, L))
    A("v_mul_u32_u24 %s, 1152, %s" % (v(vOffS), t2))
    A("v_and_b32 %s, 1, %s" % (t2, L))
    A("v_lshl_add_u32 %s, %s, 4, %s" % (v(vOffS), t2, v(vOffS)))
    A("s_lshl_b32 %s, %s, 12" % (s(sT), s(sW)))
    A("v_lshlrev_b32 %s, 3, %s" % (t3, t3))
    A("v_add_u32 %s, %s, %s" % (t3, s(sT), t3))
    A("v_lshrrev_b32 %s, 1, %s" % (t2, t1))
    A("v_lshlrev_b32 %s, 4, %s" % (v(vTa), t2))
    A("v_and_b32 %s, 1, %s" % (t2, t1))
    A("v_lshl_add_u32 %s, %s, 2, %s" % (v(vTa), t2, v(vTa)))
    A("v_bfe_u32 %s, %s, 2, 1" % (t2, L))
    A("v_add_u32 %s, %s, %s" % (v(vTa), t2, v(vTa)))
    A("v_bfe_u32 %s, %s, 3, 1" % (t2, L))
    A("v_lshl_add_u32 %s, %s, 3, %s" % (v(vTa), t2, v(vTa)))
    A("v_lshl_add_u32 %s, %s, 6, %s" % (v(vTrH), v(vTa), t3))
    A("v_and_b32 %s, 1, %s" % (t2, t1))
    A("v_lshlrev_b32 %s, 4, %s" % (v(vTa), t2))
    A("v_lshrrev_b32 %s, 1, %s" % (t2, t1))
    A("v_lshl_add_u32 %s, %s, 2, %s" % (v(vTa), t2, v(vTa)))
    A("v_bfe_u32 %s, %s, 2, 1" % (t2, L))
    A("v_add_u32 %s, %s, %s" % (v(vTa), t2, v(vTa)))
    A("v_bfe_u32 %s, %s, 3, 1" % (t2, L))
    A("v_lshl_add_u32 %s, %s, 6, %s" % (v(vTrP), v(vTa), t3))
    A("v_lshl_add_u32 %s, %s, 5, %s" % (v(vTrP), t2, v(vTrP)))
    A("v_lshl_add_u32 %s, %s, 5, %s" % (v(vTa), t2, v(vTa)))
    A("v_lshl_add_u32 %s, %s, 5, %s" % (v(vTrS), v(vTa), t3))
    sQc, sVc, sOc, sLw = 44, 45, 46, 47
    A("s_lshl_b32 %s, %s, 8" % (s(sQc), s(sH)))
    A("s_lshl_b32 %s, %s, 6" % (s(sT), s(sW)))
    A("s_add_u32 %s, %s, %s" % (s(sVc), s(sQc), s(sT)))
    A("s_and_b32 %s, %s, 1" % (s(sT), s(sW)))
    A("s_lshl_b32 %s, %s, 7" % (s(sT), s(sT)))
    A("s_add_u32 %s, %s, %s" % (s(sQc), s(sQc), s(sT)))
    A("s_mul_i32 %s, %s, 147456" % (s(sOc), s(sH)))
    A("s_mul_i32 %s, %s, 288" % (s(sT), s(sW)))
    A("s_add_u32 %s, %s, %s" % (s(sOc), s(sOc), s(sT)))
    A("s_lshl_b32 %s, %s, 12" % (s(sLw), s(sW)))

    res_qk = [0, 2, 4, 6, 8]
    res_wo = [(1, 0), (2, 1), (3, 1)]
    dfr = []
    for j in range(9):
        dfr.append(("qk", j, 0))
        if j not in res_qk:
            dfr.append(("qk", j, 1))
    for kk in range(9):
        dfr.append(("v", kk))
    for p in range(4):
        for kp in range(2):
            if (p, kp) not in res_wo:
                dfr.append(("wo", p, kp))
    dfr.append(("ws",))
    assert len(dfr) == 28
    regof = {}
    for i, d in enumerate(dfr):
        regof[d] = 256 + 16 * i if i < 16 else 64 + 16 * (i - 16)
    resid = [("qk", j, 1) for j in res_qk] + [("wo", p, kp) for p, kp in res_wo]
    res_slots = [8, 9, 0, 1, 2, 3, 6, 7]
    slotof = {}
    for i, d in enumerate(dfr):
        slotof[d] = i % 10
    for d, sl in zip(resid, res_slots):
        slotof[d] = sl
    alld = dfr + resid
    def lds_frag_addr(d, q):
        sl = slotof[d]
        if sl < 4:
            return v(vLW), sl * 16384 + q * 1024
        return v(vLW2), (sl - 6) * 16384 + q * 1024
    def rdres(d, q):
        ar, off = lds_frag_addr(d, q)
        return A.ds("ds_read_b128 %s, %s offset:%d" % (v(TB + 4 * q, 4), ar, off))

    tick = {}
    def issue_dma(d):
        sl = slotof[d]
        for i in range(4):
            if d[0] == "qk":
                A("s_lshl_b32 %s, %s, 9" % (s(sT), s(sAo + d[1])))
                A("s_add_u32 %s, %s, %s" % (s(sT), s(sT), s(sQc)))
                A("s_add_u32 %s, %s, %d" % (s(sT), s(sT), 16 * i * 8192 + d[2] * 64))
                srd, vo = WQK, vOffQ
            elif d[0] == "v":
                A("s_add_u32 %s, %s, %d" % (s(sT), s(sVc), (64 * d[1] + 16 * i) * 8192))
                srd, vo = WV, vOffQ
            elif d[0] == "wo":
                A("s_mul_i32 %s, %s, 72" % (s(sT), s(sOo + 2 * d[2] + i // 2)))
                A("s_add_u32 %s, %s, %s" % (s(sT), s(sT), s(sOc)))
                A("s_add_u32 %s, %s, %d" % (s(sT), s(sT), 16 * (i % 2) * 1152 + d[1] * 64))
                srd, vo = WO, vOffO
            else:
                A("s_add_u32 %s, %s, %d" % (s(sT), s(sOc), (32 * i) * 1152 + 256))
                srd, vo = WO, vOffS
            A("s_add_u32 m0, %s, %d" % (s(sLw), sl * 16384 + i * 1024))
            A("s_nop 0")
            tick[d] = A.vm("buffer_load_dwordx4 %s, %s, %s offen lds" % (v(vo), s(srd, 4), s(sT)))
    pending = list(alld)
    busy = {}
    def try_issue():
        while pending and slotof[pending[0]] not in busy:
            d = pending.pop(0)
            busy[slotof[d]] = d
            issue_dma(d)
    try_issue()
    for d in alld:
        A.wait_vm(tick[d])
        sl = slotof[d]
        dst = regof.get(d, TMP)
        base = {"qk": vTrH, "v": vTrH, "wo": vTrP, "ws": vTrS}[d[0]]
        A("v_add_u32 %s, %d, %s" % (v(vTa), sl * 16384, v(base)))
        for f in range(2):
            for p in range(4):
                if d[0] in ("qk", "v"):
                    off = (32 * (p // 2) + 2 * (p % 2)) * 64 + f * 32
                elif d[0] == "wo":
                    off = (32 * f + 8 * (p // 2) + 2 * (p % 2)) * 64
                else:
                    off = (64 * f + 8 * (p // 2) + 2 * (p % 2)) * 32
                A("ds_read_b64_tr_b16 %s, %s offset:%d" % (reg(dst + 8 * f + 2 * p, 2), v(vTa), off))
        A("s_waitcnt lgkmcnt(0)")
        if d in regof:
            del busy[sl]
            try_issue()
        else:
            for q in range(4):
                ar, off = lds_frag_addr(d, q)
                A("ds_write_b128 %s, %s offset:%d" % (ar, v(TMP + 4 * q, 4), off))
    A("s_waitcnt lgkmcnt(0)")
    A("s_barrier")

    c0 = 32
    A("v_and_b32 %s, 1, %s" % (t2, L))
    A("v_lshlrev_b32 %s, 4, %s" % (t2, t2))
    A("v_mov_b32 %s, 0x3f80" % t3)
    A("v_lshlrev_b32 %s, %s, %s" % (t3, t2, t3))
    A("v_lshrrev_b32 %s, 1, %s" % (t2, t0))
    for r in range(4):
        A("v_cmp_eq_u32 vcc, %d, %s" % (r, t2))
        A("s_nop 1")
        A("v_cndmask_b32 %s, 0, %s, vcc" % (v(c0 + r), t3))
    A("ds_write_b128 %s, %s offset:%d" % (v(vLX), v(c0, 4), L_SEL - X0))
    A("v_lshrrev_b32 %s, 2, %s" % (t2, v(vLX)))
    A("ds_write_b32 %s, %s offset:%d" % (t2, v(vP2), L_CST - X0 // 4 - 32768))
    A.lines.pop()
    A("v_add_u32 %s, %d, %s" % (t2, L_CST - X0 // 4, t2))
    A("ds_write_b32 %s, %s" % (t2, v(vP2)))
    A("s_mov_b32 %s, 0x3f803f80" % s(sOne))
    A("s_mov_b32 %s, 0x3f803f80" % s(sOne + 1))
    A("s_mov_b32 %s, 0x3f003f00" % s(sOne + 2))
    A("s_mov_b32 %s, 0x3f003f00" % s(sOne + 3))
    A("s_lshl_b32 %s, %s, 14" % (s(sKV), s(sH)))
    A("s_add_u32 %s, %s, %d" % (s(sKV), s(sKV), WS_KV - X0))
    A("s_add_u32 %s, %s, %d" % (s(sM0), s(sAo), L_MEM))
    A("s_lshl_b32 %s, %s, 7" % (s(sFl), s(sH)))
    A("s_add_u32 %s, %s, %d" % (s(sFl), s(sFl), WS_FLAG + F_CH * 128))
    A("s_mov_b32 %s, 0" % s(sAll))
    A("v_and_b32 %s, 7, %s" % (v(32), L))
    A("v_mul_u32_u24 %s, 1152, %s" % (v(32), v(32)))
    A("v_lshrrev_b32 %s, 3, %s" % (v(33), L))
    A("v_lshl_add_u32 %s, %s, 4, %s" % (v(32), v(33), v(32)))
    A("s_lshr_b32 %s, %s, 3" % (s(sT), s(sAo)))
    for j in range(3):
        A("buffer_load_dwordx4 %s, %s, %s, %s offen offset:%d" % (v(AR[j], 4), v(32), s(M0S, 4), s(sT), j * 128))
    lp = A.newlabel("Lpinit")
    A("s_mov_b32 %s, 0" % s(sSpin))
    A("v_mov_b32 v33, %d" % DBG_ARR)
    A.label(lp)
    A("buffer_load_dword v32, v33, %s, 0 offen sc1" % s(DBG, 4))
    A("s_add_u32 %s, %s, 1" % (s(sSpin), s(sSpin)))
    A("s_cmp_gt_u32 %s, %d" % (s(sSpin), SPIN_MAX))
    A("s_cbranch_scc1 Lchain_exit")
    A("s_waitcnt vmcnt(0)")
    A("v_readfirstlane_b32 %s, v32" % s(sSlow))
    A("s_and_b32 %s, %s, 0xffff" % (s(sT), s(sSlow)))
    A("s_cmp_lt_u32 %s, 32" % s(sT))
    A("s_cbranch_scc1 %s" % lp)
    A("v_add_u32 v32, %s, %s" % (s(sAo), v(vLX)))
    for j in range(3):
        A("ds_write_b128 v32, %s offset:%d" % (v(AR[j], 4), L_MEM - X0 + j * 1024))

    def kv_wait(r0):
        if not merged:
            return
        lw = A.newlabel("Lkvw")
        A("v_lshrrev_b32 %s, 2, %s" % (v(r0), v(vLX)))
        A("v_and_b32 %s, 31, %s" % (v(r0), v(r0)))
        A("s_mov_b32 %s, %d" % (s(sT2), WS_FLAG + F_KV * 128))
        A("s_mov_b32 %s, 0" % s(sSpin))
        A.label(lw)
        A("buffer_load_dword %s, %s, %s, %s offen sc1" % (v(r0 + 1), v(r0), s(WS, 4), s(sT2)))
        A("s_add_u32 %s, %s, 1" % (s(sSpin), s(sSpin)))
        A("s_cmp_gt_u32 %s, %d" % (s(sSpin), SPIN_MAX))
        A("s_cbranch_scc1 Lchain_exit")
        A("s_add_u32 %s, %s, 1" % (s(sT), s(sStep)))
        A("s_lshr_b32 %s, %s, 3" % (s(sT), s(sT)))
        A("s_min_u32 %s, %s, 7" % (s(sT), s(sT)))
        A("s_waitcnt vmcnt(0)")
        A("v_cmp_le_u32 vcc, 32, %s" % v(r0 + 1))
        A("s_bitcmp1_b32 vcc_lo, %s" % s(sT))
        A("s_cbranch_scc0 %s" % lw)
        A("s_cmp_eq_u64 vcc, exec")
        A("s_cselect_b32 %s, 1, 0" % s(sAll))
    def kv_dma():
        for q in range(4):
            A("s_mov_b32 m0, %d" % (L_KX + q * 4096))
            A("s_add_u32 %s, %s, %d" % (s(sT), s(sKV), q * 4096))
            for i in range(4):
                A("buffer_load_dwordx4 %s, %s, %s offen offset:%d sc1 lds" % (v(vLX), s(WS, 4), s(sT), i * 1024))
    A("s_mov_b32 %s, 0" % s(sStep))
    A("s_mov_b32 %s, %d" % (s(sIn1Z), OOB))
    A("s_mov_b32 %s, %d" % (s(sIn2Z), OOB))
    A("v_mov_b32 %s, 0" % v(vA))
    kv_wait(34)
    lsk = A.newlabel("Lsk")
    A("s_cmp_lg_u32 %s, 3" % s(sW))
    A("s_cbranch_scc1 %s" % lsk)
    kv_dma()
    A.label(lsk)
    G = [None, 10, 11]
    def zero(r, n=4):
        for k in range(0, n, 2):
            A("v_mov_b64 %s, 0" % v(r + k, 2))
    def pre_a():
        for q in range(4):
            rdres(("qk", 0, 1), q)
        for gi in (1, 2):
            A("v_add_u32 %s, %s, %s" % (v(G[gi]), s(sAo + 3 * gi), v(vLX)))
    def pre_s():
        A("s_and_b32 %s, %s, 1" % (s(sT), s(sStep)))
        A("s_mul_i32 %s, %s, %d" % (s(sT), s(sT), IN1_SLOT))
        A("s_add_u32 %s, %s, %d" % (s(sSt), s(sT), WS_IN1))
        for p in range(1, 5):
            A("s_add_u32 %s, %s, %d" % (s(sSt + p), s(sSt), p * 16384))
        A("s_add_u32 %s, %s, %s" % (s(sIn1R), s(sSt), s(sUo)))
        A("s_and_b32 %s, %s, 3" % (s(sT), s(sStep)))
        A("s_lshl_b32 %s, %s, 14" % (s(sT), s(sT)))
        A("s_add_u32 %s, %s, %d" % (s(sIn2W), s(sT), WS_IN2))
        A("s_add_u32 %s, %s, %d" % (s(sKV), s(sKV), 32 * 16384))
        A("s_sub_u32 %s, %s, %d" % (s(sWarm), s(sKV), 7 * X0))
        A("s_lshl_b32 %s, %s, 5" % (s(sT), s(sStep)))
        A("s_add_u32 %s, %s, %s" % (s(sT), s(sT), s(sH)))
        A("s_lshl_b32 %s, %s, 13" % (s(sT), s(sT)))
        A("s_add_u32 %s, %s, %d" % (s(sPub), s(sT), WS_KVM - X0 - 2048))
        A("s_lshl_b32 %s, %s, 10" % (s(sT2), s(sW)))
        A("s_add_u32 %s, %s, %s" % (s(sPubV), s(sPub), s(sT2)))
        A("s_add_u32 %s, %s, 4096" % (s(sPubV), s(sPubV)))
    pre_a()
    pre_s()
    zero(T[0], 16)
    zero(VA0); zero(VA1)
    if tot:
        A("s_memtime s[96:97]")
    if "acc" in X:
        for k in range(74, 84): A("s_mov_b32 s%d, 0" % k)
    A("s_waitcnt vmcnt(0) lgkmcnt(0)")
    A("s_cmp_ge_u32 %s, 0x10000" % s(sSlow))
    A("s_cbranch_scc1 Lstep_s")

    def cutp(name):
        if name in X:
            A("s_add_u32 %s, %s, 1" % (s(sStep), s(sStep)))
            A("s_nop 7")
            for gi in range(3):
                A("v_add_u32 %s, %s, %s" % (v([vA, 10, 11][gi]), s(sAo + 3 * gi), v(vLX)))
            A("v_lshlrev_b32 %s, 2, %s" % (v(VA0), v(vLX)))
            A("s_mov_b32 m0, %s" % s(sM0))
            A("s_waitcnt lgkmcnt(0)")
            A("s_cmp_lt_u32 %s, 63" % s(sStep))
            A("s_cbranch_scc1 Lstep" + sfx[0])
            A("s_branch Lfin")
    acc_on = "acc" in X
    def tick(k):
        if not acc_on: return
        A("s_memtime s[72:73]")
        A("s_waitcnt lgkmcnt(0)")
        A("s_sub_u32 s75, s72, s74")
        A("s_add_u32 s%d, s%d, s75" % (76 + k, 76 + k))
        A("s_mov_b32 s74, s72")
    def smf(acc, areg, breg):
        A("v_smfmac_f32_16x16x64_bf16 %s, %s, %s, %s" % (v(acc, 4), v(areg, 4), reg(breg, 8), v(vIdx)))
    def mf(acc, a, b, first):
        A("v_mfma_f32_16x16x32_bf16 %s, %s, %s, %s" % (v(acc, 4), v(a, 4), v(b, 4), "0" if first else v(acc, 4)))
    def mf16(acc, a, b, first):
        A("v_mfma_f32_16x16x16_bf16 %s, %s, %s, %s" % (v(acc, 4), v(a, 2), v(b, 2), "0" if first else v(acc, 4)))
    def cv(dst, base):
        A("v_cvt_pk_bf16_f32 %s, %s, %s" % (v(dst), v(base), v(base + 1)))
        A("v_cvt_pk_bf16_f32 %s, %s, %s" % (v(dst + 1), v(base + 2), v(base + 3)))

    def loop(sf, st_flags):
        sfx[0] = sf
        A(".p2align 6")
        A.label("Lstep" + sf)
        A.ds_n = 100; A.vm_n = 100
        nstamp[0] = 0; ncut[0] = 0
        stamp()
        tick(3)
        if acc_on:
            A("s_add_u32 s81, s81, %s" % s(sSpin))
        atk = {0: 0, 1: 0, 2: 0}
        def rdA(i):
            if i < 9:
                atk[i] = A.ds("ds_read_b128 %s, %s offset:%d" % (v(AR[i % 3], 4), v(G[i // 3]), L_MEM - X0 + (i % 3) * 1024))
            else:
                atk[i] = A.ds("ds_read_b128 %s, %s offset:%d" % (v(AR[i % 3], 4), v(vLX), L_MEM - X0 + (i - 9) * 1024))
        tbt = 0
        for j in range(9):
            need = atk[j]
            if j in res_qk:
                need = max(need, tbt)
            if need:
                A.wait_ds(need)
            b0 = regof[("qk", j, 0)]
            b1 = TB if j in res_qk else regof[("qk", j, 1)]
            nxt = ("qk", j + 2, 1) if (j in res_qk and j + 2 in res_qk) else None
            smf(T[2], AR[j % 3], b1)
            if nxt: rdres(nxt, 0); rdres(nxt, 1)
            smf(T[3], AR[j % 3], b1 + 8)
            if nxt: rdres(nxt, 2); tbt = rdres(nxt, 3)
            smf(T[0], AR[j % 3], b0)
            smf(T[1], AR[j % 3], b0 + 8)
            if j == 1:
                A("s_waitcnt vmcnt(%d)" % (0 if "rstqk" in X else 5))
                A("s_barrier")
                rdA(3)
            if j >= 1:
                rdA(j + 3)
            if "rstqk" in X:
                if j == 2: A("buffer_store_dword %s, %s, %s, %s offen %s" % (v(VA1), v(vA), s(WS, 4), s(sIn2Z), st_flags))
                if 3 <= j <= 6: A("buffer_store_dwordx4 %s, %s, %s, %s offen offset:%d %s" % (v(VA1, 4), v(vLX), s(WS, 4), s(sIn1Z), (j - 3) * 1024, st_flags))
                if j == 7: zero(VA1)
        stamp()
        tk = {}
        def rdkx(t, ks, dst):
            tk[("x", t, ks)] = A.ds("ds_read_b128 %s, %s offset:%d" % (v(dst, 4), v(vLX), L_KX - X0 + (t * 4 + ks) * 1024))
        def vmm(kk, t):
            i = 9 + kk
            if t == 0:
                A.wait_ds(atk[i])
            smf(VA[t], AR[i % 3], regof[("v", kk)] + 8 * t)
        def drain_pair(ta, tb_, dst):
            for r in range(4):
                A("v_permlane32_swap_b32 %s, %s" % (v(ta + r), v(tb_ + r)))
            A("v_pk_add_f32 %s, %s, %s" % (v(ta, 2), v(ta, 2), v(tb_, 2)))
            A("v_pk_add_f32 %s, %s, %s" % (v(ta + 2, 2), v(ta + 2, 2), v(tb_ + 2, 2)))
            cv(dst, ta)
        rdkx(0, 0, TB); rdkx(1, 0, TB + 4); rdkx(0, 1, TB + 8); rdkx(1, 1, TB + 12)
        cutp("ca")
        drain_pair(T[2], T[3], T[3])
        cutp("cb")
        A.ds("ds_write_b64 %s, %s offset:%d" % (v(vEw), v(T[3], 2), L_QK - X0 + 512))
        drain_pair(T[0], T[1], T[1])
        wq = A.ds("ds_write_b64 %s, %s offset:%d" % (v(vEw), v(T[1], 2), L_QK - X0))
        cutp("cc")
        vmm(0, 0)
        rdkx(0, 2, T[0])
        vmm(0, 1)
        vmm(1, 0)
        A("s_cmp_lt_u32 %s, 2" % s(sW))
        vmm(1, 1)
        cutp("cd")
        l01 = A.newlabel("Lw01"); l1 = A.newlabel("Lw1"); lj = A.newlabel("Lwj")
        A("s_cbranch_scc1 %s" % l01)
        A("buffer_store_dwordx2 %s, %s, %s, %s offen offset:512 sc1" % (v(T[3], 2), v(vEw), s(WS, 4), s(sPub)))
        A("buffer_store_dwordx2 %s, %s, %s, %s offen sc1" % (v(T[1], 2), v(vEw), s(WS, 4), s(sPub)))
        A.label(lj)
        A("s_cmp_eq_u32 %s, %d" % (s(sStep), nsteps - 1))
        A.wait_ds(wq)
        A("s_barrier")
        stamp()
        A("s_cbranch_scc1 Llast" + sf)
        last_state = (A.ds_n, dict(atk))
        def side01():
            A.label(l01)
            A("s_cmp_eq_u32 %s, 1" % s(sW))
            A("s_cbranch_scc1 %s" % l1)
            A("v_mov_b32 v10, %s" % s(sStep))
            A("v_mov_b32 v11, 0")
            A("s_mov_b64 exec, 1")
            A("buffer_store_dword v10, v11, %s, %s offen sc1" % (s(WS, 4), s(sFl)))
            A("s_mov_b64 exec, -1")
            A("s_branch %s" % lj)
            A.label(l1)
            A("v_lshlrev_b32 v10, 3, %s" % v(vLX))
            A("s_mov_b32 m0, %d" % L_DUMMY)
            A("s_add_u32 %s, %s, 8192" % (s(sT), s(sWarm)))
            wf = "" if "warmplain" in X else "sc1 "
            if "nowarm" not in X:
                A("buffer_load_dword v10, %s, %s offen %slds" % (s(WS, 4), s(sWarm), wf))
                A("buffer_load_dword v10, %s, %s offen %slds" % (s(WS, 4), s(sT), wf))
            A("s_branch %s" % lj)
        SX0, SX1, SM = T[1], T[3], T[0]
        QF = [T[2], AR[0], AR[1], AR[2]]
        def rdq(ks):
            for x in range(2):
                tk[("q", ks)] = A.ds("ds_read_b64_tr_b16 %s, %s offset:%d" % (v(QF[ks] + 2 * x, 2), v(vQKr), ks * 512 + x * 64))
        def rdkm(ks, dst):
            for x in range(2):
                tk[("m", ks)] = A.ds("ds_read_b64_tr_b16 %s, %s offset:%d" % (v(dst + 2 * x, 2), v(vQKr), 2048 + ks * 512 + x * 64))
        rdq(0); rdq(1)
        smf(VA[0], AR[2], regof[("v", 2)])
        rdq(2)
        smf(VA[1], AR[2], regof[("v", 2)] + 8)
        rdq(3)
        A("v_add_u32 %s, %s, %s" % (v(vA), s(sW2k), v(vLX)))
        A.wait_ds(tk[("q", 0)])
        mf(SX0, TB, QF[0], True);       rdkx(1, 2, TB)
        mf(SX1, TB + 4, QF[0], True);   rdkx(0, 3, TB + 4)
        A.wait_ds(tk[("q", 1)])
        mf(SX0, TB + 8, QF[1], False);  rdkx(1, 3, TB + 8)
        mf(SX1, TB + 12, QF[1], False); rdkm(0, TB + 12)
        A.wait_ds(tk[("x", 1, 2)])
        mf(SX0, T[0], QF[2], False)
        mf(SX1, TB, QF[2], False);      rdkm(1, TB)
        A.wait_ds(tk[("x", 1, 3)])
        mf(SX0, TB + 4, QF[3], False);  rdkm(2, TB + 4)
        mf(SX1, TB + 8, QF[3], False);  rdkm(3, TB + 8)
        VF = [TB + 12, T[2]]
        ONE = TB
        m, m2, m3 = 10, 11, vA
        A.wait_ds(tk[("m", 1)])
        mf(SM, TB + 12, QF[0], True)
        mf(SM, TB, QF[1], False)
        rdA(12)
        A.wait_ds(tk[("m", 3)])
        mf(SM, TB + 4, QF[2], False)
        rdA(13)
        A("v_max3_f32 %s, %s, %s, %s" % (v(m2), v(SX0), v(SX0 + 1), v(SX0 + 2)))
        mf(SM, TB + 8, QF[3], False)
        rdA(14)
        A("v_max3_f32 %s, %s, %s, %s" % (v(m2), v(m2), v(SX0 + 3), v(SX1)))
        stamp()
        A("v_max3_f32 %s, %s, %s, %s" % (v(m2), v(m2), v(SX1 + 1), v(SX1 + 2)))
        for t in range(2):
            tk[("vf", t)] = A.ds("ds_read_b128 %s, %s offset:%d" % (v(VF[t], 4), v(vA), L_VX - X0 + t * 1024))
        A("v_max_f32 %s, %s, %s" % (v(m2), v(m2), v(SX1 + 3)))
        vmm(3, 0)
        vmm(3, 1)
        rdA(15)
        A("v_max3_f32 %s, %s, %s, %s" % (v(m2), v(m2), v(SM), v(SM + 1)))
        A("v_max3_f32 %s, %s, %s, %s" % (v(m), v(m2), v(SM + 2), v(SM + 3)))
        A("v_max3_f32 %s, %s, %s, %s" % (v(m2), v(m2), v(SM + 2), v(SM + 3)))
        vmm(4, 0)
        A("v_permlane32_swap_b32 %s, %s" % (v(m), v(m2)))
        A("v_max_f32 %s, %s, %s" % (v(m3), v(m), v(m2)))
        A("v_max_f32 %s, %s, %s" % (v(m2), v(m), v(m2)))
        vmm(4, 1)
        rdA(16)
        A("v_permlane16_swap_b32 %s, %s" % (v(m3), v(m2)))
        A("v_max_f32 %s, %s, %s" % (v(m), v(m3), v(m2)))
        A("v_mul_f32 %s, %s, %s" % (v(m), s(sC), v(m)))
        PX, PM = TB + 4, TB + 8
        cutp("ce")
        def fm(base):
            for r in (0, 2):
                A("v_pk_fma_f32 %s, %s, %s, %s op_sel_hi:[1,0,0] neg_lo:[0,0,1] neg_hi:[0,0,1]" % (v(base + r, 2), v(base + r, 2), s(sC, 2), v(m, 2)))
        def ex(r):
            A("v_exp_f32 %s, %s" % (v(r), v(r)))
        fm(SX0); fm(SX1); fm(SM)
        ex(SX0)
        vmm(5, 0)
        ex(SX0 + 1)
        vmm(5, 1)
        rdA(17)
        ex(SX0 + 2)
        vmm(6, 0)
        ex(SX0 + 3)
        vmm(6, 1)
        ex(SX1)
        vmm(7, 0)
        ex(SX1 + 1)
        vmm(7, 1)
        ex(SX1 + 2)
        vmm(8, 0)
        ex(SX1 + 3)
        vmm(8, 1)
        cutp("cf")
        cv(PX, SX0)
        cv(PX + 2, SX1)
        ex(SM)
        ex(SM + 1)
        LS = AR[0]
        VH = AR[1]
        OT = [T[1], T[3]]
        mf(OT[0], VF[0], PX, True)
        ex(SM + 2)
        mf(OT[1], VF[1], PX, True)
        ex(SM + 3)
        A("v_mov_b64 %s, %s" % (v(ONE, 2), s(sOne, 2)))
        A("v_mov_b64 %s, %s" % (v(ONE + 2, 2), s(sOne + 2, 2)))
        cv(VH, VA0)
        mf16(LS, ONE, PX, True)
        cv(PM, SM)
        mf16(LS, ONE, PX + 2, False)
        cv(VH + 2, VA1)
        mf16(LS, ONE + 2, PM, False)
        cutp("cg")
        OA = [VA0, VA1, T[0], AR[2]]
        OS = T[2]
        zero(OA[0])
        mf16(OT[0], VH, PM, False)
        zero(OA[1])
        mf16(OT[1], VH + 2, PM, False)
        zero(OA[2])
        if "nopubv" not in X: A.vm("buffer_store_dwordx4 %s, %s, %s, %s offen sc1" % (v(VH, 4), v(vLX), s(WS, 4), s(sPubV)))
        A("v_rcp_f32 %s, %s" % (v(LS), v(LS)))
        zero(OA[3])
        A("v_add_u32 %s, %s, %s" % (v(vA), s(sOo), v(vOb)))
        OF = [AR[1], T[1], T[3], AR[0]]
        OF0 = OF[0]
        for t in range(2):
            for r in (0, 2):
                A("v_pk_mul_f32 %s, %s, %s op_sel_hi:[1,0]" % (v(OT[t] + r, 2), v(OT[t] + r, 2), v(LS, 2)))
        cv(OF0, OT[0])
        cv(OF0 + 2, OT[1])
        wo_ = A.ds("ds_write_b128 %s, %s" % (v(vA), v(OF0, 4)))
        cutp("ch")
        R1, R2, R3 = ("wo", 1, 0), ("wo", 2, 1), ("wo", 3, 1)
        rt = {}
        def bfrag(p, pos):
            d = ("wo", p, pos // 2)
            if d in regof:
                return regof[d] + 8 * (pos % 2)
            A.wait_ds(rt[(d, pos % 2)])
            return TB + 8 * (pos % 2)
        rdres(R1, 0); rt[(R1, 0)] = rdres(R1, 1)
        smf(OA[0], OF0, bfrag(0, 0))
        rdres(R1, 2)
        A("v_add_u32 %s, %s, %s" % (v(10), s(sOo + 1), v(vOb)))
        smf(OA[2], OF0, bfrag(2, 0))
        rt[(R1, 1)] = rdres(R1, 3)
        A("v_add_u32 %s, %s, %s" % (v(11), s(sOo + 2), v(vOb)))
        smf(OA[3], OF0, bfrag(3, 0))
        A("v_add_u32 %s, %s, %s" % (v(vA), s(sOo + 3), v(vOb)))
        smf(OA[1], OF0, bfrag(1, 0))
        A("s_barrier")
        stamp()
        ot = {}
        ot[1] = A.ds("ds_read_b128 %s, %s" % (v(OF[1], 4), v(10)))
        h0 = A.ds("ds_read_b128 %s, %s" % (v(OF0, 4), v(vOrH)))
        ot[2] = A.ds("ds_read_b128 %s, %s" % (v(OF[2], 4), v(11)))
        ot[3] = A.ds("ds_read_b128 %s, %s" % (v(OF[3], 4), v(vA)))
        rdres(R2, 0); rt[(R2, 0)] = rdres(R2, 1)
        zero(OS)
        def ostore(acc, p):
            cv(acc, acc)
            A("v_min_u32 %s, -2, %s" % (v(acc), v(acc)))
            A("v_min_u32 %s, -2, %s" % (v(acc + 1), v(acc + 1)))
            A.vm("buffer_store_dwordx2 %s, %s, %s, %s offen %s" % (v(acc, 2), v(vP1), s(WS, 4), s(sSt + p), st_flags))
        A("v_bfe_u32 %s, %s, 9, 1" % (v(vA), v(vLX)))
        A("v_mul_u32_u24 %s, 8188, %s" % (v(vA), v(vA)))
        A("v_sub_u32 %s, %s, %s" % (v(vA), v(vP1), v(vA)))
        A.wait_ds(ot[1])
        smf(OA[1], OF[1], TB + 8)
        rdres(R2, 2)
        smf(OA[0], OF[1], bfrag(0, 1))
        rt[(R2, 1)] = rdres(R2, 3)
        smf(OA[2], OF[1], bfrag(2, 1))
        smf(OA[3], OF[1], bfrag(3, 1))
        h1 = A.ds("ds_read_b128 %s, %s offset:1024" % (v(OF[1], 4), v(vOrH)))
        A.wait_ds(rt[(R2, 0)])
        smf(OS, OF0, regof[("ws",)])
        smf(OA[2], OF[2], TB)
        rdres(R3, 0)
        smf(OA[0], OF[2], bfrag(0, 2))
        rt[(R3, 0)] = rdres(R3, 1)
        smf(OA[2], OF[3], bfrag(2, 3))
        rdres(R3, 2)
        smf(OA[0], OF[3], bfrag(0, 3))
        rt[(R3, 1)] = rdres(R3, 3)
        A.wait_ds(h1)
        smf(OS, OF[1], regof[("ws",)] + 8)
        smf(OA[1], OF[2], bfrag(1, 2))
        ostore(OA[2], 2)
        smf(OA[1], OF[3], bfrag(1, 3))
        ostore(OA[0], 0)
        smf(OA[3], OF[2], bfrag(3, 2))
        A("v_permlane32_swap_b32 %s, %s" % (v(OS), v(OS + 2)))
        smf(OA[3], OF[3], bfrag(3, 3))
        A("v_permlane32_swap_b32 %s, %s" % (v(OS + 1), v(OS + 3)))
        A("v_add_f32 %s, %s, %s" % (v(OS), v(OS), v(OS + 2)))
        A("v_add_f32 %s, %s, %s" % (v(OS + 1), v(OS + 1), v(OS + 3)))
        A("v_cvt_pk_bf16_f32 %s, %s, %s" % (v(OS), v(OS), v(OS + 1)))
        A("v_min_u32 %s, -2, %s" % (v(OS), v(OS)))
        A.vm("buffer_store_dword %s, %s, %s, %s offen %s" % (v(OS), v(vA), s(WS, 4), s(sSt + 4), st_flags))
        ostore(OA[1], 1)
        ostore(OA[3], 3)
        stamp()

        tick(0)
        lhop2 = A.newlabel("Lhop2"); lw3 = A.newlabel("Lw3"); lnd = A.newlabel("Lnd")
        P = T[0]
        SEL = AR[0]
        D = AR[1]
        mx = AR[2]
        if "nodma" not in X and "dmalate" not in X:
            A("s_cmp_lg_u32 %s, 3" % s(sW))
            A("s_cbranch_scc1 %s" % lnd)
            kv_dma()
            A.label(lnd)
        A("ds_read_b128 %s, %s offset:%d" % (v(SEL, 4), v(vLX), L_SEL - X0))
        A("v_lshrrev_b32 %s, 2, %s" % (v(vA), v(vLX)))
        A("v_add_u32 %s, %d, %s" % (v(vA), L_CST - X0 // 4, v(vA)))
        A("ds_read_b32 %s, %s" % (v(vA), v(vA)))
        pre_a()
        A("s_mov_b32 %s, %s" % (s(sIn1Z), s(sIn1R)))
        A("s_add_u32 %s, %s, %s" % (s(sH2), s(sIn2W), s(sU2)))
        A("s_xor_b32 %s, %s, %d" % (s(sIn2Z), s(sH2), 2 * IN2_SLOT))
        A("s_add_u32 %s, %s, %s" % (s(sIn2R), s(sIn2W), s(sAo)))
        A("s_sub_u32 %s, %s, %d" % (s(sIn2R), s(sIn2R), X0))
        A("s_add_u32 %s, %s, 1" % (s(sStep), s(sStep)))
        pre_s()
        A("v_mov_b64 %s, -1" % v(VA1, 2))
        A("v_mov_b64 %s, -1" % v(VA1 + 2, 2))
        A("s_mov_b32 m0, %s" % s(sM0))
        A("s_cmp_ge_u32 %s, %d" % (s(sUnit), 0 if "nohop" in X else 72))
        A("s_cbranch_scc1 %s" % lhop2)
        A("s_mov_b32 %s, 0" % s(sSpin))
        for _ in range(d1):
            A("s_nop 7")
        A("s_waitcnt lgkmcnt(0)")
        lp1 = A.newlabel("Lp1")
        A.label(lp1)
        for j in range(4):
            A("buffer_load_dwordx4 %s, %s, %s, %s offen offset:%d sc1" % (v(P + 4 * j, 4), v(vLX), s(WS, 4), s(sIn1Z), j * 1024))
        A("s_add_u32 %s, %s, 1" % (s(sSpin), s(sSpin)))
        A("s_cmp_gt_u32 %s, %d" % (s(sSpin), SPIN_MAX))
        A("s_cbranch_scc1 Lchain_exit")
        for j in range(4):
            A("s_waitcnt vmcnt(%d)" % (3 - j))
            mf(D, P + 4 * j, SEL, j == 0)
            if j == 0:
                A("v_max3_u32 %s, %s, %s, %s" % (v(mx), v(P), v(P + 1), v(P + 2)))
                A("v_max_u32 %s, %s, %s" % (v(mx), v(mx), v(P + 3)))
            else:
                A("v_max3_u32 %s, %s, %s, %s" % (v(mx), v(mx), v(P + 4 * j), v(P + 4 * j + 1)))
                A("v_max3_u32 %s, %s, %s, %s" % (v(mx), v(mx), v(P + 4 * j + 2), v(P + 4 * j + 3)))
        A("v_cmp_eq_u32 vcc, -1, %s" % v(mx))
        A("s_cbranch_vccnz %s" % lp1)
        A("s_nop 3")
        A("v_permlane32_swap_b32 %s, %s" % (v(D), v(D + 2)))
        A("v_permlane32_swap_b32 %s, %s" % (v(D + 1), v(D + 3)))
        A("v_pk_add_f32 %s, %s, %s" % (v(D, 2), v(D, 2), v(D + 2, 2)))
        A("v_cvt_pk_bf16_f32 %s, %s, %s" % (v(D), v(D), v(D + 1)))
        A("v_min_u32 %s, -2, %s" % (v(D), v(D)))
        A("buffer_store_dword %s, %s, %s, %s offen %s" % (v(D), v(vA), s(WS, 4), s(sH2), st_flags))
        if prof:
            A("s_mov_b32 s86, %s" % s(sSpin))
        if acc_on:
            A("s_add_u32 s80, s80, %s" % s(sSpin))
        A.label(lhop2)
        tick(1)
        stamp()
        zero(T[0], 16)
        if merged:
            lkv = A.newlabel("Lkvok")
            A("s_add_u32 %s, %s, 1" % (s(sT), s(sStep)))
            A("s_and_b32 %s, %s, 7" % (s(sT), s(sT)))
            A("s_or_b32 %s, %s, %s" % (s(sT), s(sT), s(sAll)))
            A("s_cbranch_scc1 %s" % lkv)
            kv_wait(VA0)
            A.label(lkv)
        A("s_waitcnt lgkmcnt(0)")
        A("s_barrier")
        tick(2)
        if prof:
            A("s_lshl_b32 %s, %s, 2" % (s(sT), s(sH)))
            A("s_add_u32 %s, %s, %s" % (s(sT), s(sT), s(sW)))
            A("s_lshl_b32 %s, %s, 6" % (s(sT), s(sT)))
            A("s_add_u32 %s, %s, %s" % (s(sT), s(sT), s(sStep)))
            A("s_lshl_b32 %s, %s, 6" % (s(sT), s(sT)))
            A("s_add_u32 %s, %s, %d" % (s(sT), s(sT), WS_PROF))
            A("v_mov_b32 %s, 0" % v(AR[0] + 1))
            A("s_mov_b64 exec, 1")
            for k in range(nstamp[0]):
                A("v_mov_b32 %s, %s" % (v(AR[0]), s(sPT + 2 * k)))
                A("buffer_store_dword %s, %s, %s, %s offen offset:%d" % (v(AR[0]), v(AR[0] + 1), s(WS, 4), s(sT), 4 * k))
            A("v_mov_b32 %s, s86" % v(AR[0]))
            A("buffer_store_dword %s, %s, %s, %s offen offset:%d" % (v(AR[0]), v(AR[0] + 1), s(WS, 4), s(sT), 56))
            A("v_mov_b32 %s, s87" % v(AR[0]))
            A("buffer_store_dword %s, %s, %s, %s offen offset:%d" % (v(AR[0]), v(AR[0] + 1), s(WS, 4), s(sT), 60))
            A("s_mov_b64 exec, -1")
        else:
            for _ in range(d2):
                A("s_nop 7")
        if "nohop" in X:
            zero(VA0); zero(VA1)
            A("s_branch Lstep" + sf)
        A("s_mov_b32 %s, 0" % s(sSpin))
        c1, c2 = VA0 + 2, VA0 + 3
        Q = AR[0]
        lp2 = A.newlabel("Lp2")
        def poll2(first):
            for j in range(3):
                A("buffer_load_dwordx4 %s, %s, %s, %s offen offset:%d sc1" % (v(AR[j], 4), v(vLX), s(WS, 4), s(sIn2R), j * 1024))
            for j in range(3):
                A("buffer_load_dwordx4 %s, %s, %s offen offset:%d sc1 lds" % (v(vLX), s(WS, 4), s(sIn2R), j * 1024))
            n = 3
            if first and "rstqk" not in X:
                A("buffer_store_dword %s, %s, %s, %s offen %s" % (v(VA1), v(vA), s(WS, 4), s(sIn2Z), st_flags))
                for j in range(4):
                    A("buffer_store_dwordx4 %s, %s, %s, %s offen offset:%d %s" % (v(VA1, 4), v(vLX), s(WS, 4), s(sIn1Z), j * 1024, st_flags))
                n = 8
            A("s_add_u32 %s, %s, 1" % (s(sSpin), s(sSpin)))
            A("s_cmp_gt_u32 %s, %d" % (s(sSpin), SPIN_MAX))
            A("s_cbranch_scc1 Lchain_exit")
            if first:
                if "rstqk" not in X: zero(VA1)
                zero(VA0, 2)
            A("s_waitcnt vmcnt(%d)" % (n + 2))
            A("v_max3_u32 %s, %s, %s, %s" % (v(c1), v(Q), v(Q + 1), v(Q + 2)))
            A("s_waitcnt vmcnt(%d)" % (n + 1))
            A("v_max3_u32 %s, %s, %s, %s" % (v(c2), v(Q + 3), v(Q + 4), v(Q + 5)))
            A("v_max3_u32 %s, %s, %s, %s" % (v(c1), v(c1), v(Q + 6), v(Q + 7)))
            A("s_waitcnt vmcnt(%d)" % n)
            A("v_max3_u32 %s, %s, %s, %s" % (v(c2), v(c2), v(Q + 8), v(Q + 9)))
            A("v_max3_u32 %s, %s, %s, %s" % (v(c1), v(c1), v(Q + 10), v(Q + 11)))
            A("v_max_u32 %s, %s, %s" % (v(c1), v(c1), v(c2)))
            A("v_cmp_ne_u32 vcc, -1, %s" % v(c1))
            zero(c1, 2)
            if prof:
                A("s_mov_b32 s87, %s" % s(sSpin))
            A("s_cmp_eq_u64 vcc, exec")
            if not first:
                A("s_waitcnt vmcnt(0)")
            A("s_cbranch_scc1 Lstep" + sf)
        poll2(True)
        A.label(lp2)
        poll2(False)
        A("s_branch %s" % lp2)
        side01()

        A.label("Llast" + sf)
        A.ds_n, atk2 = last_state
        atk.clear(); atk.update(atk2)
        vmm(2, 0); vmm(2, 1)
        for kk in range(3, 9):
            rdA(9 + kk)
            vmm(kk, 0); vmm(kk, 1)
        A("s_nop 7")
        A("s_nop 1")
        cv(TB, VA0)
        cv(TB + 2, VA1)
        A("buffer_store_dwordx4 %s, %s, %s, %s offen sc1" % (v(TB, 4), v(vLX), s(WS, 4), s(sPubV)))
        A("s_branch Lfin")
    loop("", "")
    loop("_s", "sc1")
    A.label("Lfin")
    if acc_on:
        A("s_lshl_b32 %s, %s, 2" % (s(sT), s(sH)))
        A("s_add_u32 %s, %s, %s" % (s(sT), s(sT), s(sW)))
        A("s_lshl_b32 %s, %s, 5" % (s(sT), s(sT)))
        A("s_add_u32 %s, %s, %d" % (s(sT), s(sT), WS_PROF))
        A("v_mov_b32 v11, 0")
        for k in range(6):
            A("v_mov_b32 v10, s%d" % (76 + k))
            A("buffer_store_dword v10, v11, %s, %s offen offset:%d" % (s(WS, 4), s(sT), 4 * k))
    A("s_waitcnt vmcnt(0)")
    A("s_barrier")
    A("s_cmp_lg_u32 %s, 0" % s(sW))
    A("s_cbranch_scc1 Lchain_exit")
    A("v_mov_b32 v10, %d" % nsteps)
    A("v_mov_b32 v11, 0")
    A("s_mov_b64 exec, 1")
    A("buffer_store_dword v10, v11, %s, %s offen sc1" % (s(WS, 4), s(sFl)))
    if tot:
        A("s_memtime s[92:93]")
        A("s_waitcnt lgkmcnt(0)")
        A("s_sub_u32 s92, s92, s96")
        A("v_mov_b32 v20, s92")
        A("s_lshl_b32 %s, %s, 3" % (s(sT), s(sH)))
        A("s_add_u32 %s, %s, %d" % (s(sT), s(sT), WS_PROF - 4096))
        A("s_sub_u32 s98, s96, s98")
        A("v_mov_b32 v21, s98")
        A("buffer_store_dwordx2 v[20:21], v11, %s, %s offen" % (s(WS, 4), s(sT)))
    A.label("Lchain_exit")
    A("s_endpgm")


def standalone(prof=False, slow=False, **kw):
    from gen_gemm1 import KD
    A = Asm()
    hdr = """; @launch kernel=chain_kernel grid=(256,1,1) block=(256,1,1) lds=163840
.amdgcn_target "amdgcn-amd-amdhsa--gfx950"
.text
.globl chain_kernel
.p2align 8
.type chain_kernel,@function
chain_kernel:
"""
    A("s_cmp_ge_u32 s2, 256")
    A("s_cbranch_scc1 Lchain_exit")
    A("s_load_dwordx4 s[20:23], s[0:1], 112")
    A("s_getreg_b32 s28, hwreg(HW_REG_XCC_ID)")
    A("s_and_b32 s28, s28, 15")
    if not slow:
        A("s_cmp_lg_u32 s28, 0")
        A("s_cbranch_scc1 Lchain_exit")
    A("s_cmp_lg_u32 s28, 0")
    A("s_cselect_b32 s27, 0x10000, 0")
    A("s_waitcnt lgkmcnt(0)")
    A("s_mov_b32 s4, s22")
    A("s_mov_b32 s5, s23")
    A("s_mov_b32 s6, %d" % WS_BYTES)
    A("s_mov_b32 s7, 0x00020000")
    A("s_mov_b32 s22, 256")
    A("s_mov_b32 s23, 0x00020000")
    A("v_mov_b32 v1, 1")
    A("v_mov_b32 v2, 0")
    A("v_cmp_eq_u32 vcc, 0, v0")
    A("s_and_saveexec_b64 s[30:31], vcc")
    A("s_cbranch_execz Lnoticket")
    A("buffer_atomic_add v1, v2, s[20:23], 0 offen offset:%d sc0" % DBG_T0)
    A("s_waitcnt vmcnt(0)")
    A("ds_write_b32 v2, v1")
    A("s_waitcnt lgkmcnt(0)")
    A.label("Lnoticket")
    A("s_mov_b64 exec, s[30:31]")
    A("s_barrier")
    A("ds_read_b32 v1, v2")
    A("s_waitcnt lgkmcnt(0)")
    A("v_readfirstlane_b32 s28, v1")
    A("s_barrier")
    A("s_cmp_ge_u32 s28, 32")
    A("s_cbranch_scc1 Lchain_exit")
    gen_chain(A, prof=prof, tot=True, merged=False, **kw)
    return hdr + A.text() + '.section .rodata,"a"\n.p2align 6' + KD % "chain_kernel"

if __name__ == "__main__":
    import sys
    d1 = int(sys.argv[1]) if len(sys.argv) > 1 else 0
    d2 = int(sys.argv[2]) if len(sys.argv) > 2 else 0
    open("chain_p.s", "w").write(standalone(True, d1=d1, d2=d2))
    open("chain_np.s", "w").write(standalone(False, d1=d1, d2=d2))
    open("chain_slow.s", "w").write(standalone(False, slow=True))
    for i, X in enumerate(sys.argv[3:]):
        xs = X.split(",")
        dd = {k[:2]: int(k[2:]) for k in xs if k[:2] in ("d1", "d2")}
        open("chain_x%d.s" % i, "w").write(standalone(False, d1=dd.get("d1", d1), d2=dd.get("d2", d2), X=tuple(xs)))
```

```python
from asmlib import *
from layout import *

def f32(x):
    import struct
    return "0x%08x" % struct.unpack("<I", struct.pack("<f", x))[0]

def gemm1_setup(A):
    A("s_load_dwordx2 s[8:9], s[0:1], 0")
    A("s_load_dwordx4 s[36:39], s[0:1], 16")
    A("s_load_dwordx2 s[40:41], s[0:1], 32")
    A("s_load_dwordx4 s[44:47], s[0:1], 64")
    A("v_lshrrev_b32 v1, 6, v0")
    A("s_nop 0")
    A("v_readfirstlane_b32 s29, v1")
    A("v_and_b32 v1, 63, v0")
    A("s_waitcnt lgkmcnt(0)")
    A("s_mov_b32 s10, %d" % (2048 * 1152))
    A("s_mov_b32 s11, 0x00020000")
    A("s_mov_b32 s15, 0x00020000")
    A("s_mov_b32 s16, s46")
    A("s_mov_b32 s17, s47")
    A("s_mov_b32 s18, 9216")
    A("s_mov_b32 s19, 0x00020000")
    A("v_lshrrev_b32 v2, 3, v1")
    A("v_mul_u32_u24 v3, 1152, v2")
    A("v_lshrrev_b32 v4, 4, v1")
    A("s_and_b32 s31, s29, 1")
    A("s_lshl_b32 s31, s31, 2")
    A("v_add_u32 v4, s31, v4")
    A("v_and_b32 v5, 7, v1")
    A("v_xor_b32 v4, v4, v5")
    A("v_lshl_add_u32 v3, v4, 4, v3")
    A("s_mul_i32 s31, s29, %d" % (8 * 1152))
    A("v_add_u32 v2, s31, v3")
    A("v_lshrrev_b32 v4, 5, v1")
    A("s_lshl_b32 s31, s29, 1")
    A("v_or_b32 v5, s31, v4")
    A("v_lshlrev_b32 v5, 1, v5")
    A("v_and_b32 v6, 31, v1")
    A("v_xor_b32 v5, v5, v6")
    A("v_lshlrev_b32 v5, 4, v5")
    A("s_and_b32 s31, s29, 1")
    A("s_lshr_b32 s32, s29, 1")
    A("s_lshl_b32 s32, s32, 2")
    A("s_add_u32 s31, s31, s32")
    A("s_lshl_b32 s31, s31, 1")
    A("v_add_u32 v4, s31, v4")
    A("v_lshl_add_u32 v3, v4, 13, v5")
    A("v_mul_u32_u24 v4, 9216, v4")
    A("v_add_u32 v4, v4, v5")
    A("s_lshl_b32 s33, s31, 9")
    A("s_lshl_b32 s34, s29, 10")
    A("v_and_b32 v6, 15, v1")
    A("v_lshrrev_b32 v7, 4, v1")
    A("v_lshrrev_b32 v8, 1, v6")
    A("v_xor_b32 v8, v8, v7")
    A("v_lshlrev_b32 v8, 4, v8")
    A("v_lshl_add_u32 v8, v6, 7, v8")
    A("s_lshr_b32 s31, s29, 1")
    A("s_lshl_b32 s31, s31, 14")
    A("v_add_u32 v5, s31, v8")
    A("v_xor_b32 v6, 64, v5")
    A("v_bfe_u32 v8, v1, 2, 2")
    A("v_and_b32 v9, 1, v7")
    A("v_lshl_add_u32 v9, v9, 2, v8")
    A("v_lshl_add_u32 v8, v7, 3, v8")
    A("v_lshlrev_b32 v8, 9, v8")
    A("s_and_b32 s31, s29, 1")
    A("s_lshl_b32 s31, s31, 8")
    A("s_add_u32 s31, s31, 32768")
    A("v_add_u32 v8, s31, v8")
    A("v_and_b32 v10, 3, v1")
    for nt in range(8):
        A("v_xor_b32 v11, %d, v9" % nt)
        A("v_lshl_add_u32 v11, v11, 5, v8")
        A("v_lshl_add_u32 v%d, v10, 3, v11" % (16 + nt))
    A("v_lshrrev_b32 v12, 1, v10")
    A("v_and_b32 v13, 1, v10")
    A("v_lshlrev_b32 v13, 4, v13")
    for nt in range(8):
        p, t = nt // 2, nt % 2
        A("v_add_u32 v11, %d, v12" % (2 * p))
        A("v_xor_b32 v11, v11, v9")
        A("v_lshl_add_u32 v11, v11, 5, v8")
        A("v_add_u32 v11, v11, v13")
        A("v_add_u32 v%d, %d, v11" % (24 + nt, 8 * t))
    A("v_lshlrev_b32 v7, 4, v7")
    A("v_lshlrev_b32 v1, 4, v1")

FA = [64, 96]
FB = [128, 160]

def gemm1_decode(A, sTask, pre):
    A("s_and_b32 %s, %s, 7" % (s(pre + 4), s(sTask)))
    A("s_lshr_b32 %s, %s, 3" % (s(pre + 3), s(sTask)))
    A("s_mul_i32 %s, %s, %d" % (s(pre), s(pre + 4), 256 * 1152))
    A("s_lshr_b32 %s, %s, 4" % (s(pre + 2), s(pre + 3)))
    A("s_min_u32 %s, %s, 3" % (s(pre + 2), s(pre + 2)))
    A("s_lshl_b32 s31, %s, 4" % s(pre + 2))
    A("s_sub_u32 %s, %s, s31" % (s(pre + 3), s(pre + 3)))
    A("s_lshl_b32 %s, %s, 9" % (s(pre + 1), s(pre + 3)))

def gemm1_srd(A, pre):
    A("s_cmp_eq_u32 %s, 0" % s(pre + 2))
    A("s_cselect_b32 s12, s38, s40")
    A("s_cselect_b32 s13, s39, s41")
    A("s_cmp_eq_u32 %s, 2" % s(pre + 2))
    A("s_cselect_b32 s12, s36, s12")
    A("s_cselect_b32 s13, s37, s13")
    A("s_cmp_eq_u32 %s, 3" % s(pre + 2))
    A("s_cselect_b32 s12, s44, s12")
    A("s_cselect_b32 s13, s45, s13")
    A("s_movk_i32 s35, 8192")
    A("s_cselect_b32 s35, 9216, s35")
    A("s_mul_i32 s14, s35, 576")
    A("s_cselect_b64 vcc, -1, 0")
    A("v_cndmask_b32 v8, v3, v4, vcc")

def gemm1_dma(A, slot, sXo, sWo):
    last = None
    for j in range(8):
        A("s_add_u32 m0, s34, %d" % (slot * 65536 + j * 4096))
        A("s_add_u32 s31, %s, %d" % (s(sXo), j * 32 * 1152))
        last = A.vm("buffer_load_dwordx4 v2, s[8:11], s31 offen lds")
    for m in range(4):
        for j in range(2):
            rows = 4 * j + 16 * m
            A("s_add_u32 m0, s33, %d" % (slot * 65536 + 32768 + rows * 512))
            A("s_mul_i32 s31, s35, %d" % rows)
            A("s_add_u32 s31, s31, %s" % s(sWo))
            last = A.vm("buffer_load_dwordx4 v8, s[12:15], s31 offen lds")
    return last

def pstamp(A, on):
    if not on: return
    A("s_memtime s[90:91]")
    A("s_waitcnt lgkmcnt(0)")
    A("v_mov_b32 v250, s90")
    A("v_mov_b32 v251, s92")
    A("s_mov_b64 exec, 1")
    A("buffer_store_dword v250, v251, s[4:7], 0 offen")
    A("s_mov_b64 exec, -1")
    A("s_add_u32 s92, s92, 4")

def gemm1_body(A, next_task, done_label, publish=None, stf="", prof=False, flags=False):
    CUR, NXT = 50, 56
    sXo, sWo, sK = 62, 63, 64
    def rd(setn, slot, ks, typ):
        for mt in range(8):
            A.ds("ds_read_b128 %s, %s offset:%d" % (v(FA[setn] + 4 * mt, 4), v(5 + ks), slot * 0 + mt * 2048))
    A.c("=========== GEMM1 persistent loop ===========")
    if prof:
        A("s_lshl_b32 s92, s2, 2")
        A("s_add_u32 s92, s92, s29")
        A("s_lshl_b32 s92, s92, 8")
        A("s_add_u32 s92, s92, %d" % WS_PROF)
    pstamp(A, prof)
    if flags:
        A("s_mov_b32 s78, %d" % OOB)
    gemm1_decode(A, 48, NXT)
    gemm1_srd(A, NXT)
    def first_stages():
        A("s_mov_b32 %s, %s" % (s(sXo), s(NXT)))
        A("s_mov_b32 %s, %s" % (s(sWo), s(NXT + 1)))
        for st in range(2):
            gemm1_dma(A, st, sXo, sWo)
            A("s_add_u32 %s, %s, 128" % (s(sXo), s(sXo)))
            A("s_lshl_b32 s31, s35, 6")
            A("s_add_u32 %s, %s, s31" % (s(sWo), s(sWo)))
    first_stages()
    A("s_waitcnt vmcnt(16)")
    A.label("Lg1_task")
    for k in range(5):
        A("s_mov_b32 %s, %s" % (s(CUR + k), s(NXT + k)))
    A("s_cmp_eq_u32 %s, 1" % s(CUR + 2))
    A("s_cselect_b64 vcc, -1, 0")
    A("v_mov_b32 v32, v5")
    A("v_mov_b32 v33, v6")
    for nt in range(8):
        A("v_cndmask_b32 v%d, v%d, v%d, vcc" % (34 + nt, 24 + nt, 16 + nt))
    def reads(setn, ks):
        out = []
        for mt in range(8):
            out.append("ds_read_b128 %s, %s offset:%d" % (v(FA[setn] + 4 * mt, 4), v(32 + ks), mt * 2048))
        for nt in range(8):
            for x in range(2):
                out.append("ds_read_b64_tr_b16 %s, %s offset:%d" % (v(FB[setn] + 4 * nt + 2 * x, 2), v(34 + nt), ks * 16384 + x * 2048))
        return [out[0], out[8], out[9]] + out[10:24] + out[1:8]
    def flip():
        out = []
        for r in range(32, 42):
            out.append("v_xor_b32 v%d, 0x10000, v%d" % (r, r))
        return out
    def mm(setn, typ, first, fill):
        fill = list(fill)
        for mt in range(8):
            for nt in range(8):
                acc = a_((mt * 8 + nt) * 4, 4)
                x, w = v(FA[setn] + 4 * mt, 4), v(FB[setn] + 4 * nt, 4)
                a, b = (w, x) if typ == "T" else (x, w)
                A("v_mfma_f32_16x16x32_bf16 %s, %s, %s, %s" % (acc, a, b, "0" if first else acc))
                if fill:
                    f = fill.pop(0)
                    if callable(f): f()
                    else: A(f)
        assert not fill
    A("s_barrier")
    pstamp(A, prof)
    for r in reads(0, 0):
        A(r)
    A("s_mov_b32 %s, 0" % s(sK))
    A("s_cmp_eq_u32 %s, 1" % s(CUR + 2))
    A("s_cbranch_scc1 Lg1_N")
    for typ in ("T", "N"):
        L = "Lg1_" + typ
        A.label(L)
        A("s_waitcnt lgkmcnt(0)")
        mm(0, typ, True, reads(1, 1))
        A("s_branch %s_mid" % L)
        A.label(L + "_top")
        A("s_waitcnt lgkmcnt(0)")
        mm(0, typ, False, reads(1, 1))
        A.label(L + "_mid")
        A("s_cmp_eq_u32 %s, 8" % s(sK))
        A("s_cbranch_scc1 %s_last" % L)
        A("s_waitcnt vmcnt(0) lgkmcnt(0)")
        A("s_barrier")
        if flags:
            A("s_or_b32 s31, %s, s29" % s(sK))
            A("s_cbranch_scc0 %s_flag" % L)
            A.label(L + "_flagged")
        dm = Asm()
        A("s_and_b32 s32, %s, 1" % s(sK))
        A("s_lshl_b32 s32, s32, 16")
        A("s_add_u32 s65, s34, s32")
        A("s_add_u32 s66, s33, s32")
        A("s_cmp_ge_u32 %s, 7" % s(sK))
        A("s_cselect_b32 s67, %d, %s" % (OOB, s(sXo)))
        A("s_cselect_b32 s68, %d, %s" % (OOB, s(sWo)))
        base = flip() + reads(0, 0)
        dmas = []
        for j in range(8):
            def f(j=j):
                A("s_add_u32 m0, s65, %d" % (j * 4096))
                A("s_add_u32 s31, s67, %d" % (j * 32 * 1152))
                A("buffer_load_dwordx4 v2, s[8:11], s31 offen lds")
            dmas.append(f)
        for m in range(4):
            for j in range(2):
                def f(rows=4 * j + 16 * m):
                    A("s_add_u32 m0, s66, %d" % (32768 + rows * 512))
                    A("s_mul_i32 s31, s35, %d" % rows)
                    A("s_add_u32 s31, s31, s68")
                    A("buffer_load_dwordx4 v8, s[12:15], s31 offen lds")
                dmas.append(f)
        fill = []
        for k in range(64):
            if k % 4 == 0: fill.append(dmas.pop(0))
            elif base: fill.append(base.pop(0))
            else: fill.append(lambda: None)
        assert not base and not dmas
        mm(1, typ, False, fill)
        A("s_add_u32 %s, %s, 128" % (s(sXo), s(sXo)))
        A("s_lshl_b32 s31, s35, 6")
        A("s_add_u32 %s, %s, s31" % (s(sWo), s(sWo)))
        A("s_add_u32 %s, %s, 1" % (s(sK), s(sK)))
        A("s_branch %s_top" % L)
        A.label(L + "_last")
        A("s_waitcnt vmcnt(0) lgkmcnt(0)")
        A("s_barrier")
        mm(1, typ, False, [])
        A("s_branch Lg1_epi")
        if flags:
            A.label(L + "_flag")
            flag_add(A)
            A("s_branch %s_flagged" % L)
    A.label("Lg1_epi")
    pstamp(A, prof)
    next_task(A)
    A("s_cmp_ge_u32 s48, 528")
    A("s_cbranch_scc1 Lg1_nonext")
    gemm1_decode(A, 48, NXT)
    gemm1_srd(A, NXT)
    first_stages()
    A.label("Lg1_nonext")
    if flags:
        A("v_mov_b32 v253, %d" % DBG_ARR)
        A("buffer_load_dword v252, v253, s[20:23], 0 offen sc1")
    pstamp(A, prof)
    wm, wn = "s69", "s70"
    A("s_lshr_b32 s69, s29, 1")
    A("s_and_b32 s70, s29, 1")
    A("s_lshl_b32 s31, %s, 3" % s(CUR + 4))
    A("s_lshl_b32 s32, s69, 2")
    A("s_add_u32 s71, s31, s32")
    A("s_lshl_b32 s72, %s, 1" % s(CUR + 3))
    A("s_add_u32 s72, s72, s70")
    A("s_cmp_eq_u32 %s, 3" % s(CUR + 2))
    A("s_cbranch_scc1 Lg1_epiH")
    A("s_cmp_eq_u32 %s, 1" % s(CUR + 2))
    A("s_cbranch_scc1 Lg1_epiV")
    A("s_lshl_b32 s31, s71, 5")
    A("s_add_u32 s31, s31, s72")
    A("s_cmp_eq_u32 %s, 0" % s(CUR + 2))
    A("s_cselect_b32 s32, 14, 13")
    A("s_lshl_b32 s73, s31, s32")
    A("s_mov_b32 s31, %d" % WS_Q)
    A("s_cmp_eq_u32 %s, 0" % s(CUR + 2))
    A("s_cselect_b32 s31, %d, s31" % WS_KV)
    A("s_add_u32 s73, s73, s31")
    A("s_add_u32 s32, s32, 5")
    A("s_lshl_b32 s74, 1, s32")
    t = 192
    def pack(dst, ta, tb):
        for r in range(4):
            A("v_accvgpr_read_b32 v%d, a%d" % (t + r, ta * 4 + r))
        for r in range(4):
            A("v_accvgpr_read_b32 v%d, a%d" % (t + 4 + r, tb * 4 + r))
        for r in range(4):
            A("v_cvt_pk_bf16_f32 v%d, v%d, v%d" % (dst + r, t + 2 * r, t + 2 * r + 1))
    n = 0
    for mt in range(8):
        for p in range(4):
            dst = 200 + 4 * (n % 4); n += 1
            pack(dst, mt * 8 + 2 * p, mt * 8 + 2 * p + 1)
            if p == 0 and mt % 2 == 1:
                A("s_add_u32 s31, s73, 4096")
            A("buffer_store_dwordx4 %s, v1, s[4:7], %s offen offset:%d %s" % (v(dst, 4), "s73" if mt % 2 == 0 else "s31", p * 1024, stf))
        if mt % 2 == 1:
            A("s_add_u32 s73, s73, s74")
    A("s_branch Lg1_epi_done")
    A.label("Lg1_epiV")
    A("s_lshl_b32 s31, s71, 5")
    A("s_add_u32 s31, s31, s72")
    A("s_lshl_b32 s73, s31, 14")
    A("s_add_u32 s73, s73, %d" % (WS_KV + 8192))
    for sg in range(4):
        for nt in range(8):
            dst = 200 + 4 * (n % 4); n += 1
            pack(dst, (2 * sg) * 8 + nt, (2 * sg + 1) * 8 + nt)
            if nt == 4:
                A("s_add_u32 s31, s73, 4096")
            A("buffer_store_dwordx4 %s, v1, s[4:7], %s offen offset:%d %s" % (v(dst, 4), "s73" if nt < 4 else "s31", (nt % 4) * 1024, stf))
        A("s_add_u32 s73, s73, %d" % (32 * 16384))
    A("s_branch Lg1_epi_done")
    A.label("Lg1_epiH")
    A("s_lshl_b32 s31, s72, 8")
    for p in range(4):
        A("buffer_load_dwordx4 %s, v7, s[16:19], s31 offen offset:%d" % (v(200 + 4 * p, 4), p * 64))
    A("s_mul_i32 s73, s71, %d" % (2 * 144 * 1024))
    A("s_lshl_b32 s31, s72, 12")
    A("s_add_u32 s73, s73, s31")
    A("s_add_u32 s73, s73, %d" % WS_H)
    import math
    c1 = -2.0 * math.sqrt(2.0 / math.pi) * math.log2(math.e)
    A("s_mov_b32 s76, %s" % f32(c1 * 0.044715))
    A("s_mov_b32 s77, %s" % f32(c1 * 0.044715))
    A("v_mov_b32 v248, %s" % f32(c1))
    A("v_mov_b32 v249, %s" % f32(c1))
    A("s_waitcnt vmcnt(0)")
    for k in range(16):
        A("v_lshlrev_b32 v%d, 16, v%d" % (216 + 2 * k, 200 + k))
        A("v_and_b32 v%d, 0xffff0000, v%d" % (217 + 2 * k, 200 + k))
    u = 176
    for mt in range(8):
        for p in range(4):
            dst = 200 + 4 * (n % 4); n += 1
            ta, tb = mt * 8 + 2 * p, mt * 8 + 2 * p + 1
            for r in range(4):
                A("v_accvgpr_read_b32 v%d, a%d" % (t + r, ta * 4 + r))
            for r in range(4):
                A("v_accvgpr_read_b32 v%d, a%d" % (t + 4 + r, tb * 4 + r))
            for r in range(0, 8, 2):
                A("v_pk_add_f32 %s, %s, %s" % (v(t + r, 2), v(t + r, 2), v(216 + 8 * p + r, 2)))
            for r in range(0, 8, 2):
                A("v_pk_mul_f32 %s, %s, %s" % (v(u + r, 2), v(t + r, 2), v(t + r, 2)))
            for r in range(0, 8, 2):
                A("v_pk_fma_f32 %s, %s, s[76:77], v[248:249]" % (v(u + r, 2), v(u + r, 2)))
            for r in range(0, 8, 2):
                A("v_pk_mul_f32 %s, %s, %s" % (v(u + r, 2), v(u + r, 2), v(t + r, 2)))
            for r in range(8):
                A("v_exp_f32 v%d, v%d" % (u + r, u + r))
            for r in range(0, 8, 2):
                A("v_pk_add_f32 %s, %s, 1.0 op_sel_hi:[1,0]" % (v(u + r, 2), v(u + r, 2)))
            for r in range(8):
                A("v_rcp_f32 v%d, v%d" % (u + r, u + r))
            for r in range(0, 8, 2):
                A("v_pk_mul_f32 %s, %s, %s" % (v(t + r, 2), v(t + r, 2), v(u + r, 2)))
            for r in range(4):
                A("v_cvt_pk_bf16_f32 v%d, v%d, v%d" % (dst + r, t + 2 * r, t + 2 * r + 1))
            A("buffer_store_dwordx4 %s, v1, s[4:7], s73 offen offset:%d %s" % (v(dst, 4), p * 1024, stf))
        A("s_add_u32 s73, s73, %d" % (144 * 1024))
    A.label("Lg1_epi_done")
    pstamp(A, prof)
    if flags:
        A("s_sub_u32 s31, %s, 1" % s(CUR + 2))
        A("s_max_i32 s31, s31, 0")
        A("s_lshl_b32 s31, s31, 7")
        A("s_lshl_b32 s32, %s, 2" % s(CUR + 4))
        A("s_add_u32 s31, s31, s32")
        A("s_add_u32 s78, s31, %d" % WS_FLAG)
        lw = A.newlabel("Lg1fw"); lok = A.newlabel("Lg1fok")
        A("s_mov_b32 s32, 0")
        A("s_waitcnt vmcnt(32)")
        A.label(lw)
        A("v_readfirstlane_b32 s31, v252")
        A("s_and_b32 s31, s31, 0xffff")
        A("s_cmp_ge_u32 s31, 32")
        A("s_cbranch_scc1 %s" % lok)
        A("s_add_u32 s32, s32, 1")
        A("s_cmp_gt_u32 s32, %d" % (1 << 20))
        A("s_cbranch_scc1 Lexit")
        A("buffer_load_dword v252, v253, s[20:23], 0 offen sc1")
        A("s_waitcnt vmcnt(0)")
        A("s_branch %s" % lw)
        A.label(lok)
    A("s_cmp_ge_u32 s48, 528")
    A("s_cbranch_scc1 Lg1_done")
    A("s_waitcnt vmcnt(48)")
    A("s_branch Lg1_task")
    A.label("Lg1_done")
    if flags:
        A("s_waitcnt vmcnt(0)")
        A("s_barrier")
        A("s_cmp_lg_u32 s29, 0")
        A("s_cbranch_scc1 %s" % done_label)
        flag_add(A)
    A("s_branch %s" % done_label)

def flag_add(A):
    A("v_mov_b32 v254, 1")
    A("v_mov_b32 v253, 0")
    A("s_mov_b64 exec, 1")
    A("buffer_atomic_add v254, v253, s[4:7], s78 offen")
    A("s_mov_b64 exec, -1")

def wait_word(A, sOff, need, vt=250, sleep=1, exit_label="Lexit"):
    lw = A.newlabel("Lww"); lok = A.newlabel("Lwok")
    A("v_mov_b32 v%d, 0" % vt)
    A("s_mov_b32 s49, 0")
    A.label(lw)
    A("buffer_load_dword v%d, v%d, s[4:7], %s offen sc1" % (vt + 1, vt, sOff))
    A("s_add_u32 s49, s49, 1")
    A("s_cmp_gt_u32 s49, %d" % (1 << 20))
    A("s_cbranch_scc1 %s" % exit_label)
    A("s_waitcnt vmcnt(0)")
    A("v_cmp_le_u32 vcc, %s, v%d" % (need, vt + 1))
    A("s_cbranch_vccnz %s" % lok)
    A("s_sleep %d" % sleep)
    A("s_branch %s" % lw)
    A.label(lok)

KD = """
.amdhsa_kernel %s
  .amdhsa_next_free_vgpr 512
  .amdhsa_next_free_sgpr 102
  .amdhsa_accum_offset 256
  .amdhsa_group_segment_fixed_size 0
  .amdhsa_kernarg_size 128
  .amdhsa_user_sgpr_count 2
  .amdhsa_user_sgpr_kernarg_segment_ptr 1
  .amdhsa_system_sgpr_workgroup_id_x 1
.end_amdhsa_kernel
"""
def kernel_head(A, name):
    A.lines.append(".globl %s\n.p2align 8\n.type %s,@function\n%s:" % (name, name, name))
def ws_srd(A):
    A("s_load_dwordx4 s[20:23], s[0:1], 112")
    A("s_waitcnt lgkmcnt(0)")
    A("s_mov_b32 s4, s22")
    A("s_mov_b32 s5, s23")
    A("s_mov_b32 s6, %d" % WS_BYTES)
    A("s_mov_b32 s7, 0x00020000")
    A("s_mov_b32 s22, 256")
    A("s_mov_b32 s23, 0x00020000")

def gemm1_kernel(A, prof=False):
    kernel_head(A, "gemm1_kernel")
    A("s_cmp_ge_u32 s2, 256")
    A("s_cbranch_scc1 Lg1_exit")
    ws_srd(A)
    gemm1_setup(A)
    A("s_and_b32 s31, s2, 7")
    A("s_lshr_b32 s32, s2, 6")
    A("s_lshl_b32 s32, s32, 3")
    A("s_add_u32 s31, s31, s32")
    A("s_lshl_b32 s31, s31, 3")
    A("s_bfe_u32 s32, s2, 0x30003")
    A("s_add_u32 s48, s31, s32")
    def nxt(A):
        A("s_add_u32 s48, s48, 256")
    gemm1_body(A, nxt, "Lg1_exit", prof=prof)
    A.label("Lg1_exit")
    A("s_endpgm")

if __name__ == "__main__":
    import sys
    A = Asm()
    gemm1_kernel(A, prof=len(sys.argv) > 1)
    txt = """; @launch kernel=gemm1_kernel grid=(256,1,1) block=(256,1,1) lds=163840
.amdgcn_target "amdgcn-amd-amdhsa--gfx950"
.text
""" + A.text() + '.section .rodata,"a"\n.p2align 6\n' + KD % "gemm1_kernel"
    open("gemm1.s", "w").write(txt)
```

```python
from asmlib import *
from layout import *
from gen_gemm1 import f32, kernel_head, ws_srd, KD
import math

def t2_role(A, sRole, wait_inputs=None, wait_chain=None, wait_base=None, ldf="sc1", exit_label="Lt2_exit"):
    A.c("=========== T2 role ===========")
    A("s_load_dwordx2 s[12:13], s[0:1], 40")
    A("s_load_dwordx2 s[16:17], s[0:1], 104")
    A("v_lshrrev_b32 v1, 6, v0")
    A("s_nop 0")
    A("v_readfirstlane_b32 s29, v1")
    A("v_and_b32 v1, 63, v0")
    A("s_mul_i32 s30, %s, 171" % s(sRole))
    A("s_lshr_b32 s30, s30, 10")
    A("s_mul_i32 s31, s30, 6")
    A("s_sub_u32 s31, %s, s31" % s(sRole))
    A("s_lshr_b32 s36, s30, 3")
    A("s_and_b32 s30, s30, 7")
    A("s_lshl_b32 s37, s30, 2")
    A("s_add_u32 s37, s37, s29")
    A("s_waitcnt lgkmcnt(0)")
    A("s_mov_b32 s14, %d" % (4096 * 1152))
    A("s_mov_b32 s15, 0x00020000")
    A("s_mov_b32 s18, %d" % (2048 * 1152))
    A("s_mov_b32 s19, 0x00020000")
    for i in range(3):
        A("v_add_u32 v8, %d, v1" % (64 * i))
        A("v_mul_u32_u24 v9, 171, v8")
        A("v_lshrrev_b32 v9, 11, v9")
        A("v_mul_u32_u24 v10, 12, v9")
        A("v_sub_u32 v10, v8, v10")
        A("v_mul_u32_u24 v9, 1152, v9")
        A("v_lshl_add_u32 v%d, v10, 4, v9" % (2 + i))
    A("s_mul_i32 s32, s29, 24576")
    A("s_mul_i32 s33, s37, 147456")
    A("s_mul_i32 s34, s31, 192")
    A("s_add_u32 s33, s33, s34")
    for b in range(8):
        for i in range(3):
            A("s_add_u32 m0, s32, %d" % (b * 3072 + i * 1024))
            A("s_add_u32 s34, s33, %d" % (b * 16 * 1152))
            A("buffer_load_dwordx4 v%d, s[12:15], s34 offen lds" % (2 + i))
    A("v_lshrrev_b32 v9, 4, v1")
    A("v_bfe_u32 v10, v1, 2, 2")
    A("v_and_b32 v11, 3, v1")
    A("v_lshl_add_u32 v12, v9, 2, v10")
    A("v_mul_u32_u24 v12, 192, v12")
    A("v_lshl_add_u32 v12, v11, 4, v12")
    A("v_add_u32 v8, s32, v12")
    A("v_lshl_add_u32 v12, v9, 3, v10")
    A("v_lshlrev_b32 v12, 4, v12")
    A("v_and_b32 v13, 1, v1")
    A("v_lshl_add_u32 v12, v13, 3, v12")
    A("s_waitcnt vmcnt(0)")
    A("v_add_u32 v2, s32, v12")
    for ks in range(4):
        for nt in range(6):
            for x in range(2):
                A("ds_read_b64_tr_b16 %s, v8 offset:%d" % (a_((ks * 6 + nt) * 4 + 2 * x, 2), (32 * ks + 16 * x) * 192 + (nt // 2) * 64 + (nt % 2) * 8))
        A("s_waitcnt lgkmcnt(0)")
    A("v_and_b32 v12, 15, v1")
    for r in range(4):
        A("v_lshl_add_u32 v13, v9, 2, %d" % r)
        A("v_cmp_le_u32 %s, v13, v12" % s(50 + 2 * r, 2))
    A("v_mul_u32_u24 v3, 1152, v12")
    A("v_lshl_add_u32 v3, v9, 4, v3")
    A("v_lshlrev_b32 v4, 2, v12")
    A("v_lshlrev_b32 v1, 4, v1")
    A("v_mov_b32 v6, 0x3f803f80")
    A("v_mov_b32 v7, 0x3f803f80")
    A("v_mov_b32 v8, 0x3f003f00")
    A("v_mov_b32 v9, 0x3f003f00")
    A("v_mov_b32 v5, 0xff800000")
    A("s_mov_b32 s42, 0x3e0293ee")
    A("s_barrier")
    QF, KF, VF, KM, VM = 64, 96, 128, 160, 176
    S, P, OT, OF, LS = 192, 204, 212, 16, 244
    ACC = 96
    def mf(acc, a, b, first):
        A("v_mfma_f32_16x16x32_bf16 %s, %s, %s, %s" % (reg(acc, 4), reg(a, 4), reg(b, 4), "0" if first else reg(acc, 4)))
    def mf16(acc, a, b, first):
        A("v_mfma_f32_16x16x16_bf16 %s, %s, %s, %s" % (reg(acc, 4), reg(a, 2), reg(b, 2), "0" if first else reg(acc, 4)))
    def cv(dst, base):
        A("v_cvt_pk_bf16_f32 %s, %s, %s" % (v(dst), v(base), v(base + 1)))
        A("v_cvt_pk_bf16_f32 %s, %s, %s" % (v(dst + 1), v(base + 2), v(base + 3)))
    def load_qkv(sSeg):
        A("s_lshl_b32 s33, %s, 5" % s(sSeg))
        A("s_add_u32 s33, s33, s37")
        A("s_lshl_b32 s34, s33, 13")
        A("s_add_u32 s34, s34, %d" % WS_Q)
        A("s_lshl_b32 s33, s33, 14")
        A("s_add_u32 s33, s33, %d" % WS_KV)
        for j in range(8):
            if j == 4: A("s_add_u32 s34, s34, 4096")
            A("buffer_load_dwordx4 %s, v1, s[4:7], s34 offen offset:%d %s" % (v(QF + 4 * j, 4), (j % 4) * 1024, ldf))
        for j in range(16):
            if j and j % 4 == 0: A("s_add_u32 s33, s33, 4096")
            A("buffer_load_dwordx4 %s, v1, s[4:7], s33 offen offset:%d %s" % (v(KF + 4 * j, 4), (j % 4) * 1024, ldf))
    if wait_inputs: wait_inputs(A)
    load_qkv(36)
    A.label("Lt2_seg")
    A("s_lshl_b32 s35, s36, 5")
    A("s_add_u32 s35, s35, s37")
    A("s_lshl_b32 s35, s35, 13")
    A("s_add_u32 s35, s35, %d" % WS_KVM)
    if wait_chain: wait_chain(A)
    for j in range(2):
        A("buffer_load_dwordx4 %s, v1, s[4:7], s35 offen offset:%d %s" % (v(OT + 4 * j, 4), j * 1024, ldf))
    A("s_add_u32 s35, s35, 2048")
    for j in range(4):
        A("buffer_load_dwordx4 %s, v1, s[4:7], s35 offen offset:%d %s" % (v(VM + 4 * j, 4), j * 1024, ldf))
    A("v_add_u32 v10, s32, v1")
    A("s_waitcnt vmcnt(4)")
    for j in range(2):
        A("ds_write_b128 v10, %s offset:%d" % (v(OT + 4 * j, 4), j * 1024))
    A("s_waitcnt lgkmcnt(0)")
    for ks in range(4):
        for x in range(2):
            A("ds_read_b64_tr_b16 %s, v2 offset:%d" % (v(KM + 4 * ks + 2 * x, 2), ks * 512 + x * 64))
    A("s_waitcnt vmcnt(0) lgkmcnt(0)")
    for qt in range(2):
        SM, SX0, SX1 = S, S + 4, S + 8
        for ks in range(4):
            mf(SM, KM + 4 * ks, QF + 16 * qt + 4 * ks, ks == 0)
            mf(SX0, KF + 4 * ks, QF + 16 * qt + 4 * ks, ks == 0)
            if qt == 1:
                mf(SX1, KF + 16 + 4 * ks, QF + 16 * qt + 4 * ks, ks == 0)
        A("s_nop 7")
        diag = SX0 if qt == 0 else SX1
        for r in range(4):
            A("v_cndmask_b32 %s, v5, %s, %s" % (v(diag + r), v(diag + r), s(50 + 2 * r, 2)))
        m, m2 = 10, 11
        A("v_max3_f32 v10, %s, %s, %s" % (v(SM), v(SM + 1), v(SM + 2)))
        A("v_max3_f32 v10, v10, %s, %s" % (v(SM + 3), v(SX0)))
        A("v_max3_f32 v10, v10, %s, %s" % (v(SX0 + 1), v(SX0 + 2)))
        if qt == 1:
            A("v_max3_f32 v10, v10, %s, %s" % (v(SX1), v(SX1 + 1)))
            A("v_max3_f32 v10, v10, %s, %s" % (v(SX1 + 2), v(SX1 + 3)))
        A("v_max_f32 v10, v10, %s" % v(SX0 + 3))
        for sw in ("v_permlane32_swap_b32", "v_permlane16_swap_b32"):
            A("v_mov_b32 v11, v10")
            A("s_nop 1")
            A("%s v10, v11" % sw)
            A("v_max_f32 v10, v10, v11")
        A("v_mul_f32 v10, s42, v10")
        n = 12 if qt == 1 else 8
        for r in range(0, n, 2):
            A("v_pk_fma_f32 %s, %s, s[42:43], v[10:11] op_sel_hi:[1,0,0] neg_lo:[0,0,1] neg_hi:[0,0,1]" % (v(S + r, 2), v(S + r, 2)))
        for r in range(n):
            A("v_exp_f32 %s, %s" % (v(S + r), v(S + r)))
        PX, PM = P, P + 4
        cv(PM, SM)
        cv(PX, SX0)
        if qt == 1:
            cv(PX + 2, SX1)
        A("s_nop 1")
        mf16(LS, 8, PM, True)
        mf16(LS, 6, PX, False)
        if qt == 1:
            mf16(LS, 6, PX + 2, False)
        for et in range(8):
            mf16(OT + 4 * et, VM + 2 * et, PM, True)
        for et in range(8):
            if qt == 1: mf(OT + 4 * et, VF + 4 * et, PX, False)
            else: mf16(OT + 4 * et, VF + 4 * et, PX, False)
        A("v_rcp_f32 %s, %s" % (v(LS), v(LS)))
        A("s_nop 4")
        for r in range(0, 32, 2):
            A("v_pk_mul_f32 %s, %s, %s op_sel_hi:[1,0]" % (v(OT + r, 2), v(OT + r, 2), v(LS, 2)))
        for et in range(8):
            cv(OF + 2 * et, OT + 4 * et)
        A("s_nop 1")
        for ks in range(4):
            for nt in range(6):
                mf(256 + ACC + (qt * 6 + nt) * 4, 256 + (ks * 6 + nt) * 4, OF + 4 * ks, ks == 0)
    A("s_add_u32 s40, s36, 4")
    A("s_min_u32 s40, s40, 63")
    load_qkv(40)
    A("s_mul_i32 s33, s29, 12288")
    A("s_add_u32 s33, s33, 98304")
    A("v_add_u32 v10, s33, v1")
    A("s_nop 4")
    for k in range(12):
        A("ds_write_b128 v10, %s offset:%d" % (a_(ACC + 4 * k, 4), k * 1024))
    A("s_mul_i32 s33, s29, 3072")
    A("s_add_u32 s34, s33, 98304")
    A("v_add_u32 v10, s34, v1")
    A("s_waitcnt lgkmcnt(0)")
    A("s_barrier")
    R = 160
    for sw in range(4):
        for k in range(3):
            A("ds_read_b128 %s, v10 offset:%d" % (v(R + 12 * sw + 4 * k, 4), sw * 12288 + k * 1024))
    A("s_mul_i32 s34, s36, 6")
    A("s_add_u32 s34, s34, s31")
    A("s_mul_i32 s35, s34, %d" % (8 * 12288))
    A("s_add_u32 s35, s35, %d" % WS_PART)
    A("s_mul_i32 s38, s30, 12288")
    A("s_add_u32 s38, s38, s35")
    A("s_add_u32 s38, s38, s33")
    A("s_waitcnt lgkmcnt(0)")
    for r in range(0, 12, 2):
        A("v_pk_add_f32 %s, %s, %s" % (v(R + r, 2), v(R + r, 2), v(R + 12 + r, 2)))
        A("v_pk_add_f32 %s, %s, %s" % (v(R + 24 + r, 2), v(R + 24 + r, 2), v(R + 36 + r, 2)))
        A("v_pk_add_f32 %s, %s, %s" % (v(R + r, 2), v(R + r, 2), v(R + 24 + r, 2)))
    for k in range(3):
        A("buffer_store_dwordx4 %s, v1, s[4:7], s38 offen offset:%d sc1" % (v(R + 4 * k, 4), k * 1024))
    A("s_waitcnt vmcnt(0)")
    A("s_barrier")
    A("s_lshl_b32 s34, s34, 7")
    A("s_add_u32 s34, s34, %d" % (WS_FLAG + F_T2 * 128))
    A("v_mov_b32 v10, 1")
    A("v_mov_b32 v11, 0")
    A("v_mov_b32 v12, 98304")
    lsk = A.newlabel("Lt2sk")
    A("s_cmp_lg_u32 s29, 0")
    A("s_cbranch_scc1 %s" % lsk)
    A("s_mov_b64 exec, 1")
    A("buffer_atomic_add v10, v11, s[4:7], s34 offen sc0")
    A("s_waitcnt vmcnt(0)")
    A("ds_write_b32 v12, v10")
    A("s_waitcnt lgkmcnt(0)")
    A("s_mov_b64 exec, -1")
    A.label(lsk)
    A("s_barrier")
    A("ds_read_b32 v10, v12")
    A("s_waitcnt lgkmcnt(0)")
    A("v_readfirstlane_b32 s39, v10")
    A("s_barrier")
    lnext = A.newlabel("Lt2next")
    A("s_cmp_lg_u32 s39, 7")
    A("s_cbranch_scc1 %s" % lnext)
    A("s_cmp_eq_u32 s29, 3")
    A("s_cbranch_scc1 %s" % lnext)
    if wait_base: wait_base(A)
    A("s_lshl_b32 s33, s29, 11")
    A("s_add_u32 s35, s35, s33")
    B = 32
    for qt in range(2):
        A("s_lshl_b32 s33, s36, 1")
        A("s_add_u32 s33, s33, %d" % qt)
        A("s_lshl_b32 s34, s33, 6")
        A("s_add_u32 s34, s34, %d" % WS_G)
        A("buffer_load_dword %s, v4, s[4:7], s34 offen %s" % (v(B + 16 + 2 * qt), ldf))
        A("s_mul_i32 s33, s33, 6")
        A("s_add_u32 s33, s33, s31")
        A("s_mul_i32 s33, s33, 6144")
        A("s_lshl_b32 s34, s29, 11")
        A("s_add_u32 s33, s33, s34")
        A("s_add_u32 s33, s33, %d" % WS_BASE)
        for hf in range(2):
            A("buffer_load_dwordx4 %s, v1, s[4:7], s33 offen offset:%d %s" % (v(B + qt * 8 + hf * 4, 4), hf * 1024, ldf))
    for hg in range(8):
        for qt in range(2):
            A("s_add_u32 s33, s35, %d" % (hg * 12288 + qt * 6144))
            for hf in range(2):
                r = R + hg * 16 + qt * 8 + hf * 4 if hg < 5 else 256 + 144 + (hg - 5) * 16 + qt * 8 + hf * 4
                A("buffer_load_dwordx4 %s, v1, s[4:7], s33 offen offset:%d sc1" % (reg(r, 4), hf * 1024))
    A("s_waitcnt vmcnt(0)")
    for hg in range(1, 8):
        if hg >= 5:
            for r in range(16):
                A("v_accvgpr_read_b32 %s, a%d" % (v(240 + r), 144 + (hg - 5) * 16 + r))
        src = R + hg * 16 if hg < 5 else 240
        for r in range(0, 16, 2):
            A("v_pk_add_f32 %s, %s, %s" % (v(R + r, 2), v(R + r, 2), v(src + r, 2)))
    for qt in range(2):
        for r in range(0, 8, 2):
            A("v_pk_fma_f32 %s, %s, %s, %s op_sel_hi:[1,0,1]" % (v(R + 8 * qt + r, 2), v(R + 8 * qt + r, 2), v(B + 16 + 2 * qt, 2), v(B + 8 * qt + r, 2)))
        for r in range(4):
            A("v_cvt_pk_bf16_f32 %s, %s, %s" % (v(R + 32 + 4 * qt + r), v(R + 8 * qt + 2 * r), v(R + 8 * qt + 2 * r + 1)))
        A("s_mul_i32 s33, s36, %d" % (32 * 1152))
        A("s_mul_i32 s34, s31, 192")
        A("s_add_u32 s33, s33, s34")
        A("s_lshl_b32 s34, s29, 6")
        A("s_add_u32 s33, s33, s34")
        A("s_add_u32 s33, s33, %d" % (qt * 16 * 1152))
        A("buffer_store_dwordx4 %s, v3, s[16:19], s33 offen" % v(R + 32 + 4 * qt, 4))
    A("s_nop 1")
    A.label(lnext)
    A("s_add_u32 s36, s36, 4")
    A("s_cmp_lt_u32 s36, 64")
    A("s_cbranch_scc1 Lt2_seg")

def t2_kernel(A):
    kernel_head(A, "t2_kernel")
    A("s_cmp_ge_u32 s2, 192")
    A("s_cbranch_scc1 Lt2_exit")
    ws_srd(A)
    A("s_and_b32 s48, s2, 7")
    A("s_mul_i32 s48, s48, 24")
    A("s_lshr_b32 s49, s2, 3")
    A("s_add_u32 s48, s48, s49")
    t2_role(A, 48)
    A.label("Lt2_exit")
    A("s_endpgm")
```

```python
WS_BYTES = 0x10000000
WS_IN1 = 0x100000
IN1_SLOT = 72 * 4096
WS_IN2 = 0x200000
IN2_SLOT = 16384
WS_PROF = 0x300000
WS_KV = 0x1000000
WS_Q = 0x3000000
WS_KVM = 0x4000000
WS_H = 0x5000000
WS_O = 0x6400000
WS_B = 0x7400000
OOB = 0x7ff00000
WS_BASE = 0x7400000
WS_G = 0x7900000
WS_PART = 0x8000000
WS_FLAG = 0x10000
F_T2 = 64
N_FLAGS = 512
F_KV = 0
F_Q = 1
F_H = 2
F_CH = 8
F_BASE = 448+64
N_FLAGS = 1024
DBG_T0 = 128
DBG_ARR = 160
```

```python
import sys
from asmlib import *
from layout import *
import gen_gemm1, gen_ffn2, gen_t2, gen_chain4
from gen_gemm1 import kernel_head, ws_srd, KD, wait_word, flag_add
NAME = "gated_mix__memory_aug_recurrent_mem_tr__dense_activation_gelu__prompt_kernel"

def build(chain_kw=None, force_float=False, prof=False):
    A = Asm()
    kernel_head(A, NAME)
    A("s_cmp_ge_u32 s2, 256")
    A("s_cbranch_scc1 Lexit")
    ws_srd(A)
    if prof:
        A("s_memrealtime s[100:101]")
    A("s_getreg_b32 s80, hwreg(HW_REG_XCC_ID)")
    A("s_and_b32 s80, s80, 7")
    A("s_getreg_b32 s27, hwreg(HW_REG_XCC_ID)")
    A("s_and_b32 s27, s27, 15")
    A("s_cmp_lg_u32 s27, 0")
    A("s_cselect_b32 s27, 0x10000, 0")
    if force_float:
        A("s_lshr_b32 s80, s2, 5")
    A("s_mov_b32 s81, 0")
    A("v_mov_b32 v2, 0")
    A.label("Lclaim")
    A("s_lshl_b32 s31, s80, 2")
    A("s_cmp_eq_u32 s80, 0")
    A("s_cselect_b32 s31, %d, s31" % DBG_T0)
    A("v_mov_b32 v1, 1")
    A("v_cmp_eq_u32 vcc, 0, v0")
    A("s_and_saveexec_b64 s[32:33], vcc")
    A("s_cbranch_execz Lnoticket")
    A("buffer_atomic_add v1, v2, s[20:23], s31 offen sc0")
    A("s_waitcnt vmcnt(0)")
    A("ds_write_b32 v2, v1")
    A("s_waitcnt lgkmcnt(0)")
    A.label("Lnoticket")
    A("s_mov_b64 exec, s[32:33]")
    A("s_barrier")
    A("ds_read_b32 v1, v2")
    A("s_waitcnt lgkmcnt(0)")
    A("v_readfirstlane_b32 s28, v1")
    A("s_barrier")
    A("s_cmp_lt_u32 s28, 32")
    A("s_cbranch_scc1 Lclaimed")
    A("s_add_u32 s80, s80, 1")
    A("s_and_b32 s80, s80, 7")
    A("s_add_u32 s81, s81, 1")
    A("s_cmp_lt_u32 s81, 8")
    A("s_cbranch_scc1 Lclaim")
    A("s_branch Lexit")
    A.label("Lclaimed")
    A("s_cmp_eq_u32 s80, 0")
    A("s_cbranch_scc1 Lchain")
    A("s_sub_u32 s80, s80, 1")
    A("s_mov_b32 s81, s28")
    A("s_lshl_b32 s82, s80, 5")
    A("s_add_u32 s82, s82, s81")
    A("s_mul_i32 s31, s82, 293")
    A("s_lshr_b32 s31, s31, 11")
    assert all((x * 293) >> 11 == x // 7 for x in range(224))
    A("s_mul_i32 s32, s31, 7")
    A("s_sub_u32 s32, s82, s32")
    A("s_lshl_b32 s31, s31, 3")
    A("s_add_u32 s48, s31, s32")
    A("s_lshl_b32 s31, s82, 3")
    A("s_add_u32 s83, s31, 7")
    A("s_add_u32 s31, s82, %d" % (384 - 32))
    A("s_cmp_ge_u32 s82, 32")
    A("s_cselect_b32 s83, s31, s83")
    A("s_add_u32 s31, s82, %d" % (256 - 176))
    A("s_cmp_ge_u32 s82, 176")
    A("s_cselect_b32 s83, s31, s83")
    A("s_mul_i32 s31, s80, 12")
    A("s_add_u32 s31, s31, s81")
    A("s_add_u32 s84, s31, %d" % (256 + 48))
    A("s_cmp_ge_u32 s84, 384")
    A("s_cselect_b32 s84, 9999, s84")
    A("s_cmp_ge_u32 s81, 12")
    A("s_cselect_b32 s84, 9999, s84")
    A("s_mul_i32 s31, s80, 30")
    A("s_mul_i32 s32, s80, 24")
    A("s_add_u32 s32, s32, 24")
    A("s_cmp_lt_u32 s80, 4")
    A("s_cselect_b32 s31, s31, s32")
    A("s_cselect_b32 s32, 30, 24")
    A("s_sub_u32 s33, 31, s81")
    A("s_add_u32 s85, s31, s33")
    A("s_cmp_lt_u32 s33, s32")
    A("s_cselect_b32 s85, s85, 9999")
    gen_gemm1.gemm1_setup(A)
    def nxt(A):
        A("s_mov_b32 s48, s83")
        A("s_mov_b32 s83, s84")
        A("s_mov_b32 s84, 9999")
    gen_gemm1.gemm1_body(A, nxt, "Lw_ffn2", stf="sc1", flags=True)
    A.label("Lw_ffn2")
    A("s_cmp_ge_u32 s85, 192")
    A("s_cbranch_scc1 Lexit")
    A("s_barrier")
    def wait_h(A):
        A("s_lshr_b32 s35, s30, 2")
        A("s_lshl_b32 s35, s35, 2")
        A("s_add_u32 s35, s35, %d" % (WS_FLAG + F_H * 128))
        wait_word(A, "s35", 18)
    gen_ffn2.ffn2_task(A, 85, ldf="sc1", stf="sc1", wait_h=wait_h)
    A("s_waitcnt vmcnt(0)")
    A("s_barrier")
    A("s_lshl_b32 s78, s85, 7")
    A("s_add_u32 s78, s78, %d" % (WS_FLAG + F_BASE * 128))
    A("s_cmp_lg_u32 s29, 0")
    A("s_cbranch_scc1 Lw_t2")
    flag_add(A)
    A.label("Lw_t2")
    def wait_inputs(A):
        for line, need in ((F_KV, 32), (F_Q, 16)):
            for mb in range(8):
                A("s_mov_b32 s35, %d" % (WS_FLAG + line * 128 + mb * 4))
                wait_word(A, "s35", need)
    def wait_chain(A):
        A("s_lshl_b32 s33, s37, 7")
        A("s_add_u32 s33, s33, %d" % (WS_FLAG + F_CH * 128))
        A("s_add_u32 s34, s36, 1")
        wait_word(A, "s33", "s34")
    def wait_base(A):
        A("s_lshr_b32 s33, s36, 1")
        A("s_mul_i32 s33, s33, 6")
        A("s_add_u32 s33, s33, s31")
        A("s_lshl_b32 s33, s33, 7")
        A("s_add_u32 s33, s33, %d" % (WS_FLAG + F_BASE * 128))
        wait_word(A, "s33", 1)
    gen_t2.t2_role(A, 85, wait_inputs=wait_inputs, wait_chain=wait_chain, wait_base=wait_base)
    A.label("Lexit")
    A("s_endpgm")
    A.label("Lchain")
    gen_chain4.gen_chain(A, **(chain_kw or {}))
    hdr = open("gated_mix__memory_aug_recurrent_mem_tr__dense_activation_gelu__prompt.s.ref").read()
    hdr = hdr[:hdr.index("; Override launch")]
    return hdr + """; @launch kernel=%s grid=(256,1,1) block=(256,1,1) lds=163840
.amdgcn_target "amdgcn-amd-amdhsa--gfx950"
.text
""" % NAME + A.text() + '.section .rodata,"a"\n.p2align 6' + KD % NAME

if __name__ == "__main__":
    kw = dict(X=("rstqk",), d1=4, d2=4)
    open("all.s", "w").write(build(kw))
    open("all_ff.s", "w").write(build(kw, force_float=True))
    kw["tot"] = True
    open("all_t.s", "w").write(build(kw))
```

```python
from asmlib import *
from layout import *

X0 = 65536
L_KX = X0
L_VX = X0 + 8192
L_MEM = X0 + 16384
L_O = L_MEM
L_QK = L_MEM + 9216
L_SEL = L_QK + 4096
L_CST = L_SEL + 1024
L_DUMMY = L_CST + 256
assert L_DUMMY + 256 <= X0 + 32768
SPIN_MAX = 1 << 20

def gen_chain(A, prof=False, nsteps=64, tot=False, d1=0, d2=0, X=(), merged=True, rt=False):
    st_flags = "sc1"
    WS, WQK, WV, WO, DBG, M0S = 4, 8, 12, 16, 20, 24
    sH, sW, sStep, sT, sT2, sSpin = 28, 29, 30, 31, 32, 33
    sIn1R, sIn2W, sIn2R, sIn2Z, sKV, sPub, sUnit, sIn1Z, sC = 34, 35, 36, 37, 38, 39, 40, 41, 42
    sWarm, sPubV, sH2, sM0, sU2, sAll, sFl, sMK = 53, 63, 70, 71, 43, 95, 93, 87
    sRz, sRb, sPubK = 44, 84, 47
    sOne = 88
    sSt = 48
    sAo = 54
    sOo = 64
    sW2k = 68
    sUo = 69
    sPT = 72
    vIdx, vLX, vLW, vLW2, vEw, vQKr, vOrH, vP1, vOb, vA = range(10)
    vP2 = 31
    sSlow = 94
    sfx = ['']
    VA1 = 12
    AR = [16, 20, 24]
    T = [28, 32, 36, 40]
    TB = 44
    VA0 = 60
    VA = [VA0, VA1]
    nstamp = [0]
    ncut = [0]
    def stamp():
        ncut[0] += 1
        if ("cut%d" % (ncut[0] - 1)) in X:
            A("s_add_u32 %s, %s, 1" % (s(sStep), s(sStep)))
            A("s_mov_b32 m0, %s" % s(sM0))
            A("s_nop 7")
            for gi in range(3):
                A("v_add_u32 %s, %s, %s" % (v([vA, 10, 11][gi]), s(sAo + 3 * gi), v(vLX)))
            A("v_lshlrev_b32 %s, 2, %s" % (v(VA0), v(vLX)))
            A("s_waitcnt lgkmcnt(0)")
            A("s_cmp_lt_u32 %s, 63" % s(sStep))
            A("s_cbranch_scc1 Lstep" + sfx[0])
            A("s_branch Lfin")
        if prof:
            A("s_memtime %s" % s(sPT + 2 * nstamp[0], 2))
            nstamp[0] += 1

    A.c("================= chain role =================")
    if tot:
        A("s_memtime s[98:99]")
    A("s_mov_b32 %s, s27" % s(sSlow))
    A("s_load_dwordx2 s[24:25], s[0:1], 8")
    A("s_load_dwordx4 s[44:47], s[0:1], 16")
    A("s_load_dwordx2 s[12:13], s[0:1], 32")
    A("s_load_dwordx2 s[16:17], s[0:1], 40")
    vLane = 27
    A("v_lshrrev_b32 v1, 6, v0")
    A("s_nop 0")
    A("v_readfirstlane_b32 %s, v1" % s(sW))
    A("v_and_b32 %s, 63, v0" % v(vLane))
    A("s_waitcnt lgkmcnt(0)")
    A("s_cmp_lt_u32 %s, 2" % s(sW))
    A("s_cselect_b32 s8, s44, s46")
    A("s_cselect_b32 s9, s45, s47")
    for b, n in ((WQK, 576 * 8192), (WV, 576 * 8192), (WO, 4096 * 1152), (M0S, 9216)):
        A("s_mov_b32 %s, %d" % (s(b + 2), n))
        A("s_mov_b32 %s, 0x00020000" % s(b + 3))
    L = v(vLane)
    t0, t1, t2, t3 = v(16), v(17), v(18), v(19)
    A("v_and_b32 %s, 15, %s" % (t0, L))
    A("v_lshrrev_b32 %s, 4, %s" % (t1, L))
    A("v_and_b32 %s, 8, %s" % (t2, L))
    A("v_mov_b32 %s, 0x4444" % v(vIdx))
    A("v_mov_b32 %s, 0xeeee" % t3)
    A("v_cmp_ne_u32 vcc, 0, %s" % t2)
    A("s_nop 1")
    A("v_cndmask_b32 %s, %s, %s, vcc" % (v(vIdx), v(vIdx), t3))
    A("v_lshlrev_b32 %s, 4, %s" % (t2, L))
    A("v_add_u32 %s, %d, %s" % (v(vLX), X0, t2))
    A("s_lshl_b32 %s, %s, 12" % (s(sT), s(sW)))
    A("v_add_u32 %s, %s, %s" % (v(vLW), s(sT), t2))
    A("v_add_u32 %s, 98304, %s" % (v(vLW2), v(vLW)))
    A("v_and_b32 %s, 7, %s" % (t2, L))
    A("v_lshl_add_u32 %s, %s, 3, %s" % (t2, t1, t2))
    A("v_lshlrev_b32 %s, 4, %s" % (t2, t2))
    A("v_add_u32 %s, %d, %s" % (v(vOb), L_O, t2))
    A("v_bfe_u32 %s, %s, 3, 1" % (t3, L))
    A("v_lshl_add_u32 %s, %s, 9, %s" % (v(vOrH), t3, v(vOb)))
    A("v_lshrrev_b32 %s, 1, %s" % (t2, t1))
    A("v_lshl_add_u32 %s, %s, 4, %s" % (t2, t2, t0))
    A("v_lshlrev_b32 %s, 4, %s" % (t2, t2))
    A("v_and_b32 %s, 1, %s" % (t3, t1))
    A("v_lshl_add_u32 %s, %s, 3, %s" % (t2, t3, t2))
    A("s_lshl_b32 %s, %s, 10" % (s(sT), s(sW)))
    A("s_add_u32 %s, %s, %d" % (s(sT), s(sT), X0))
    A("v_add_u32 %s, %s, %s" % (v(vEw), s(sT), t2))
    A("v_lshrrev_b32 %s, 2, %s" % (t2, t0))
    A("v_lshl_add_u32 %s, %s, 3, %s" % (t2, t1, t2))
    A("v_lshlrev_b32 %s, 4, %s" % (t2, t2))
    A("v_and_b32 %s, 1, %s" % (t3, L))
    A("v_lshl_add_u32 %s, %s, 3, %s" % (t2, t3, t2))
    A("v_add_u32 %s, %d, %s" % (v(vQKr), L_QK, t2))
    A("v_bfe_u32 %s, %s, 3, 1" % (t3, L))
    A("v_lshrrev_b32 %s, 1, %s" % (t2, t1))
    A("v_lshlrev_b32 %s, 1, %s" % (t2, t2))
    A("v_add_u32 %s, %s, %s" % (t2, t2, t3))
    A("v_lshlrev_b32 %s, 12, %s" % (t2, t2))
    A("v_and_b32 %s, 7, %s" % (t3, L))
    A("v_lshl_add_u32 %s, %s, 4, %s" % (t2, t3, t2))
    A("v_and_b32 %s, 1, %s" % (t3, t1))
    A("v_lshl_add_u32 %s, %s, 3, %s" % (t2, t3, t2))
    if "newp1" in X:
        A("v_lshlrev_b32 %s, 12, %s" % (t2, t1))
        A("v_lshl_add_u32 %s, %s, 3, %s" % (t2, t0, t2))
    A("s_mul_i32 %s, %s, %d" % (s(sT), s(sW), 18 * 4096))
    A("s_lshl_b32 %s, %s, 7" % (s(sT2), s(sH)))
    A("s_add_u32 %s, %s, %s" % (s(sT), s(sT), s(sT2)))
    A("v_add_u32 %s, %s, %s" % (v(vP1), s(sT), t2))
    A("s_lshl_b32 %s, %s, 5" % (s(sUnit), s(sW)))
    A("s_add_u32 %s, %s, %s" % (s(sUnit), s(sUnit), s(sH)))
    A("v_lshlrev_b32 %s, 4, %s" % (t2, t0))
    A("v_and_b32 %s, 1, %s" % (t3, t1))
    A("v_lshl_add_u32 %s, %s, 3, %s" % (t2, t3, t2))
    A("v_lshrrev_b32 %s, 1, %s" % (t3, t1))
    A("v_lshl_add_u32 %s, %s, 2, %s" % (t2, t3, t2))
    A("s_lshl_b32 %s, %s, 7" % (s(sT), s(sUnit)))
    A("s_lshl_b32 %s, %s, 12" % (s(sUo), s(sUnit)))
    A("s_sub_u32 %s, %s, %d" % (s(sUo), s(sUo), X0))
    A("s_cmp_lt_u32 %s, 72" % s(sUnit))
    A("s_cselect_b32 %s, %s, %d" % (s(sU2), s(sT), OOB))
    A("s_cselect_b32 %s, %s, %d" % (s(sUo), s(sUo), OOB))
    A("v_mov_b32 %s, %d" % (t3, OOB))
    A("v_cmp_gt_u32 vcc, 8, %s" % t0)
    A("s_nop 1")
    A("v_cndmask_b32 %s, %s, %s, vcc" % (v(vP2), t3, t2))
    A("s_mov_b32 %s, 0x3e0293ee" % s(sC))
    A("s_lshl_b32 %s, %s, 11" % (s(sW2k), s(sW)))
    for j in range(9):
        A("s_add_u32 %s, %s, %d" % (s(sT), s(sW), j // 3))
        A("s_sub_u32 %s, %s, 3" % (s(sT2), s(sT)))
        A("s_cmp_ge_u32 %s, 3" % s(sT))
        A("s_cselect_b32 %s, %s, %s" % (s(sT), s(sT2), s(sT)))
        A("s_mul_i32 %s, %s, 3072" % (s(sT), s(sT)))
        A("s_add_u32 %s, %s, %d" % (s(sAo + j), s(sT), (j % 3) * 1024))
    for j in range(4):
        A("s_add_u32 %s, %s, %d" % (s(sT), s(sW), j))
        A("s_and_b32 %s, %s, 3" % (s(sT), s(sT)))
        A("s_lshl_b32 %s, %s, 9" % (s(sOo + j), s(sT)))

    vOffQ, vOffO, vOffS, vTrH, vTrS, vTa, vOffV, vTrV = 20, 21, 22, 23, 25, 26, 28, 29
    vTrW = 48
    TMP = 32
    A("v_lshrrev_b32 %s, 3, %s" % (t2, L))
    A("v_and_b32 %s, 7, %s" % (t3, L))
    A("v_lshlrev_b32 %s, 13, %s" % (v(vOffQ), t2))
    A("v_lshl_add_u32 %s, %s, 4, %s" % (v(vOffQ), t3, v(vOffQ)))
    A("v_mul_u32_u24 %s, 1152, %s" % (v(vOffO), t2))
    A("v_lshl_add_u32 %s, %s, 4, %s" % (v(vOffO), t3, v(vOffO)))
    A("v_lshrrev_b32 %s, 1, %s" % (t2, L))
    A("v_mul_u32_u24 %s, 1152, %s" % (v(vOffS), t2))
    A("v_and_b32 %s, 1, %s" % (t2, L))
    A("v_lshl_add_u32 %s, %s, 4, %s" % (v(vOffS), t2, v(vOffS)))
    A("v_lshrrev_b32 %s, 2, %s" % (t2, L))
    A("v_and_b32 %s, 3, %s" % (t3, L))
    A("v_lshlrev_b32 %s, 13, %s" % (v(vOffV), t2))
    A("v_lshl_add_u32 %s, %s, 4, %s" % (v(vOffV), t3, v(vOffV)))
    A("s_lshl_b32 %s, %s, 12" % (s(sT), s(sW)))
    A("v_lshlrev_b32 %s, 3, %s" % (t3, t3))
    A("v_add_u32 %s, %s, %s" % (t3, s(sT), t3))
    A("v_lshrrev_b32 %s, 1, %s" % (t2, t1))
    A("v_lshlrev_b32 %s, 4, %s" % (v(vTa), t2))
    A("v_and_b32 %s, 1, %s" % (t2, t1))
    A("v_lshl_add_u32 %s, %s, 2, %s" % (v(vTa), t2, v(vTa)))
    A("v_bfe_u32 %s, %s, 2, 1" % (t2, L))
    A("v_add_u32 %s, %s, %s" % (v(vTa), t2, v(vTa)))
    A("v_bfe_u32 %s, %s, 3, 1" % (t2, L))
    A("v_lshl_add_u32 %s, %s, 3, %s" % (v(vTa), t2, v(vTa)))
    A("v_lshl_add_u32 %s, %s, 7, %s" % (v(vTrH), v(vTa), t3))
    A("v_lshl_add_u32 %s, %s, 6, %s" % (v(vTrV), v(vTa), t3))
    A("v_and_b32 %s, 1, %s" % (t2, t1))
    A("v_lshlrev_b32 %s, 4, %s" % (v(vTa), t2))
    A("v_lshrrev_b32 %s, 1, %s" % (t2, t1))
    A("v_lshl_add_u32 %s, %s, 2, %s" % (v(vTa), t2, v(vTa)))
    A("v_bfe_u32 %s, %s, 2, 1" % (t2, L))
    A("v_add_u32 %s, %s, %s" % (v(vTa), t2, v(vTa)))
    A("v_bfe_u32 %s, %s, 3, 1" % (t2, L))
    for p in range(4):
        A("s_add_u32 %s, %s, %d" % (s(sT), s(sW), 2 * p))
        A("v_add_u32 v52, %s, %s" % (s(sT), t2))
        A("v_lshrrev_b32 v53, 2, v52")
        A("v_and_b32 v52, 3, v52")
        A("v_lshl_add_u32 %s, %s, 7, %s" % (v(vTrW + p), v(vTa), t3))
        A("v_lshl_add_u32 %s, v53, 14, %s" % (v(vTrW + p), v(vTrW + p)))
        A("v_lshl_add_u32 %s, v52, 5, %s" % (v(vTrW + p), v(vTrW + p)))
    A("v_lshl_add_u32 %s, %s, 5, %s" % (v(vTa), t2, v(vTa)))
    A("v_lshl_add_u32 %s, %s, 5, %s" % (v(vTrS), v(vTa), t3))
    sQc, sVc, sOc, sLw = 44, 45, 46, 47
    A("s_lshl_b32 %s, %s, 8" % (s(sQc), s(sH)))
    A("s_lshl_b32 %s, %s, 6" % (s(sT), s(sW)))
    A("s_add_u32 %s, %s, %s" % (s(sVc), s(sQc), s(sT)))
    A("s_and_b32 %s, %s, 1" % (s(sT), s(sW)))
    A("s_lshl_b32 %s, %s, 7" % (s(sT), s(sT)))
    A("s_add_u32 %s, %s, %s" % (s(sQc), s(sQc), s(sT)))
    A("s_mul_i32 %s, %s, 147456" % (s(sOc), s(sH)))
    A("s_lshl_b32 %s, %s, 8" % (s(sT), s(sW)))
    A("s_add_u32 %s, %s, %s" % (s(sOc), s(sOc), s(sT)))
    A("s_lshl_b32 %s, %s, 12" % (s(sLw), s(sW)))

    res_qk = [0, 2, 4, 6, 8]
    res_wo = [(1, 0), (2, 1), (3, 1)]
    dfr = []
    for j in range(9):
        dfr.append(("qk", j, 0))
        if j not in res_qk:
            dfr.append(("qk", j, 1))
    for kk in range(9):
        dfr.append(("v", kk))
    for p in range(4):
        for kp in range(2):
            if (p, kp) not in res_wo:
                dfr.append(("wo", p, kp))
    dfr.append(("ws",))
    assert len(dfr) == 28
    regof = {}
    for i, d in enumerate(dfr):
        regof[d] = 256 + 16 * i if i < 16 else 64 + 16 * (i - 16)
    slotof = {("wo", 1, 0): 0, ("wo", 2, 1): 1, ("wo", 3, 1): 2}
    for j, sl in zip(res_qk, (3, 6, 7, 8, 9)):
        slotof[("qk", j, 1)] = sl
    def lds_frag_addr(d, q):
        sl = slotof[d]
        if sl < 4:
            return v(vLW), sl * 16384 + q * 1024
        return v(vLW2), (sl - 6) * 16384 + q * 1024
    def rdres(d, q):
        ar, off = lds_frag_addr(d, q)
        return A.ds("ds_read_b128 %s, %s offset:%d" % (v(TB + 4 * q, 4), ar, off))

    def load_weights(order, first):
        tick = {}
        slots = {}
        free = [4, 5, 9, 8, 7, 6, 3]
        pending = list(order)
        def dma(vo, srd, lds):
            A("s_add_u32 m0, %s, %d" % (s(sLw), lds))
            A("s_nop 0")
            return A.vm("buffer_load_dwordx4 %s, %s, %s offen lds" % (v(vo), s(srd, 4), s(sT)))
        def alloc(c):
            if c[0] == "WO":
                for tr in ((3, 4, 5), (6, 7, 8)):
                    if all(x in free for x in tr):
                        return list(tr)
                return None
            if c[0] in ("V", "WS"):
                cand = [x for x in free if not (any(p[0] == "WO" for p in pending) and x != 9)]
                return cand[:1] if cand else None
            fin = slotof.get(("qk", c[1], 1))
            if fin is not None:
                if fin not in free: return None
                o = [x for x in free if x != fin]
                return [fin, o[0]] if o else None
            return free[:2] if len(free) >= 2 else None
        def issue(c):
            sl = slots[c]
            if c[0] == "QK":
                for i in range(8):
                    A("s_lshl_b32 %s, %s, 9" % (s(sT), s(sAo + c[1])))
                    A("s_add_u32 %s, %s, %s" % (s(sT), s(sT), s(sQc)))
                    A("s_add_u32 %s, %s, %d" % (s(sT), s(sT), 8 * i * 8192))
                    tick[c] = dma(vOffQ, WQK, sl[i // 4] * 16384 + (i % 4) * 1024)
            elif c[0] == "V":
                for i in range(4):
                    A("s_add_u32 %s, %s, %d" % (s(sT), s(sVc), (64 * c[1] + 16 * i) * 8192))
                    tick[c] = dma(vOffV, WV, sl[0] * 16384 + i * 1024)
            elif c[0] == "WO":
                for lc in range(3):
                    for i in range(4):
                        A("s_mul_i32 %s, %s, 72" % (s(sT), s(sOo + c[1])))
                        A("s_add_u32 %s, %s, %s" % (s(sT), s(sT), s(sOc)))
                        A("s_add_u32 %s, %s, %d" % (s(sT), s(sT), 8 * i * 1152 + 128 * lc))
                        tick[c] = dma(vOffO, WO, sl[lc] * 16384 + i * 1024)
            else:
                for i in range(4):
                    A("s_lshl_b32 %s, %s, 5" % (s(sT), s(sW)))
                    A("s_add_u32 %s, %s, %s" % (s(sT), s(sT), s(sOc)))
                    A("s_add_u32 %s, %s, %d" % (s(sT), s(sT), (32 * i) * 1152 + 256))
                    tick[c] = dma(vOffS, WO, sl[0] * 16384 + i * 1024)
        def try_issue():
            while pending:
                sl = alloc(pending[0])
                if sl is None: break
                c = pending.pop(0)
                for x in sl: free.remove(x)
                slots[c] = sl
                issue(c)
        try_issue()
        first()
        init_t = A.vm_n
        arrived = False
        for c in order:
            assert c in tick, c
            A.wait_vm(tick[c])
            if not arrived and tick[c] > init_t:
                arrived = True
                A("s_add_u32 %s, %s, 1" % (s(sT), s(sSlow)))
                A("v_mov_b32 v56, %s" % s(sT))
                A("v_mov_b32 v57, %d" % DBG_ARR)
                A("s_mov_b64 exec, 1")
                A.vm("buffer_atomic_add v56, v57, %s, 0 offen" % s(DBG, 4))
                A("s_mov_b64 exec, -1")
            sl = slots[c]
            post = []
            keep = []
            if c[0] == "QK":
                for half in range(2):
                    A("v_add_u32 %s, %d, %s" % (v(vTa), sl[half] * 16384, v(vTrH)))
                    for tt in range(4):
                        dst = regof.get(("qk", c[1], tt // 2), TMP) + 8 * (tt % 2)
                        for pp in range(2):
                            A("ds_read_b64_tr_b16 %s, %s offset:%d" % (reg(dst + 4 * half + 2 * pp, 2), v(vTa), 2 * pp * 128 + tt * 32))
                d = ("qk", c[1], 1)
                if d not in regof:
                    post = [(d, q, TMP + 4 * q) for q in range(4)]
                    keep = [slotof[d]]
            elif c[0] == "V":
                A("v_add_u32 %s, %d, %s" % (v(vTa), sl[0] * 16384, v(vTrV)))
                for f in range(2):
                    for p in range(4):
                        A("ds_read_b64_tr_b16 %s, %s offset:%d" % (reg(regof[("v", c[1])] + 8 * f + 2 * p, 2), v(vTa), (32 * (p // 2) + 2 * (p % 2)) * 64 + f * 32))
            elif c[0] == "WO":
                nt = 0
                for p in range(4):
                    d = ("wo", p, c[1] // 2)
                    if d in regof:
                        dst = regof[d] + 8 * (c[1] % 2)
                    else:
                        dst = TMP + 8 * nt; nt += 1
                        post += [(d, 2 * (c[1] % 2) + q, dst + 4 * q) for q in range(2)]
                    A("v_add_u32 %s, %d, %s" % (v(vTa), sl[0] * 16384, v(vTrW + p)))
                    for pp in range(4):
                        A("ds_read_b64_tr_b16 %s, %s offset:%d" % (reg(dst + 2 * pp, 2), v(vTa), (8 * (pp // 2) + 2 * (pp % 2)) * 128))
            else:
                A("v_add_u32 %s, %d, %s" % (v(vTa), sl[0] * 16384, v(vTrS)))
                for f in range(2):
                    for p in range(4):
                        A("ds_read_b64_tr_b16 %s, %s offset:%d" % (reg(regof[("ws",)] + 8 * f + 2 * p, 2), v(vTa), (64 * f + 8 * (p // 2) + 2 * (p % 2)) * 32))
            A("s_waitcnt lgkmcnt(0)")
            for d, q, r in post:
                ar, off = lds_frag_addr(d, q)
                A("ds_write_b128 %s, %s offset:%d" % (ar, v(r, 4), off))
            for x in sl:
                if x not in keep: free.append(x)
            free.sort(key=lambda x: [4, 5, 9, 8, 7, 6, 3].index(x))
            try_issue()
        assert not pending
    def init_block():
        for r in range(4):
            A("v_mov_b32 %s, -1" % v(56 + r))
        for slot in range(2):
            A("s_add_u32 %s, %s, %d" % (s(sT), s(sUo), WS_IN1 + slot * IN1_SLOT))
            for j in range(4):
                A.vm("buffer_store_dwordx4 v[56:59], %s, %s, %s offen offset:%d %s" % (v(vLX), s(WS, 4), s(sT), j * 1024, st_flags))
        for slot in range(4):
            A("s_add_u32 %s, %s, %d" % (s(sT), s(sU2), WS_IN2 + slot * IN2_SLOT))
            A.vm("buffer_store_dword v56, %s, %s, %s offen %s" % (v(vP2), s(WS, 4), s(sT), st_flags))
        for r in range(4):
            A("v_mov_b32 %s, 0" % v(60 + r))
        A("s_lshl_b32 %s, %s, 12" % (s(sT), s(sH)))
        A("s_lshl_b32 %s, %s, 10" % (s(sT2), s(sW)))
        A("s_add_u32 %s, %s, %s" % (s(sT), s(sT), s(sT2)))
        A("s_add_u32 %s, %s, %d" % (s(sT), s(sT), WS_FLAG - X0))
        A.vm("buffer_store_dwordx4 v[60:63], %s, %s, %s offen sc1" % (v(vLX), s(WS, 4), s(sT)))
    WOs = [("WO", p) for p in range(4)]
    Vs = [("V", k) for k in range(9)]
    QN = [("QK", j) for j in (1, 3, 5, 7)]
    QR = [("QK", j) for j in res_qk]
    lodd = A.newlabel("Lodd"); ldone = A.newlabel("Lwdone")
    A("s_bitcmp1_b32 %s, 0" % s(sW))
    A("s_cbranch_scc1 %s" % lodd)
    load_weights(WOs + [("WS",)] + Vs + QN + QR, init_block)
    A("s_branch %s" % ldone)
    A.label(lodd)
    load_weights(WOs + [("WS",)] + QN[:1] + Vs + QN[1:] + QR, init_block)
    A.label(ldone)
    A("s_waitcnt vmcnt(0) lgkmcnt(0)")
    A("s_barrier")

    c0 = 32
    A("v_and_b32 %s, 1, %s" % (t2, L))
    A("v_lshlrev_b32 %s, 4, %s" % (t2, t2))
    A("v_mov_b32 %s, 0x3f80" % t3)
    A("v_lshlrev_b32 %s, %s, %s" % (t3, t2, t3))
    A("v_lshrrev_b32 %s, 1, %s" % (t2, t0))
    for r in range(4):
        A("v_cmp_eq_u32 vcc, %d, %s" % (r, t2))
        A("s_nop 1")
        A("v_cndmask_b32 %s, 0, %s, vcc" % (v(c0 + r), t3))
    A("ds_write_b128 %s, %s offset:%d" % (v(vLX), v(c0, 4), L_SEL - X0))
    A("v_lshrrev_b32 %s, 2, %s" % (t2, v(vLX)))
    A("ds_write_b32 %s, %s offset:%d" % (t2, v(vP2), L_CST - X0 // 4 - 32768))
    A.lines.pop()
    A("v_add_u32 %s, %d, %s" % (t2, L_CST - X0 // 4, t2))
    A("ds_write_b32 %s, %s" % (t2, v(vP2)))
    A("s_mov_b32 %s, 0x3f803f80" % s(sOne))
    A("s_mov_b32 %s, 0x3f803f80" % s(sOne + 1))
    A("s_mov_b32 %s, 0x3f003f00" % s(sOne + 2))
    A("s_mov_b32 %s, 0x3f003f00" % s(sOne + 3))
    A("s_lshl_b32 %s, %s, 14" % (s(sKV), s(sH)))
    A("s_add_u32 %s, %s, %d" % (s(sKV), s(sKV), WS_KV - X0))
    A("s_lshl_b32 %s, %s, 12" % (s(sT), s(sW)))
    A("s_add_u32 %s, %s, %s" % (s(sKV), s(sKV), s(sT)))
    A("s_add_u32 %s, %s, %d" % (s(sMK), s(sT), L_KX))
    A("s_add_u32 %s, %s, %d" % (s(sM0), s(sAo), L_MEM))
    A("s_lshl_b32 %s, %s, 7" % (s(sFl), s(sH)))
    A("s_add_u32 %s, %s, %d" % (s(sFl), s(sFl), WS_FLAG + F_CH * 128))
    A("s_mov_b32 %s, 0" % s(sAll))
    A("s_lshl_b32 %s, %s, 12" % (s(sRb), s(sH)))
    A("s_lshl_b32 %s, %s, 10" % (s(sT), s(sW)))
    A("s_add_u32 %s, %s, %s" % (s(sRb), s(sRb), s(sT)))
    A("s_sub_u32 %s, %s, %d" % (s(sRb), s(sRb), X0))
    A("s_mov_b32 %s, %d" % (s(sRb + 1), OOB))
    A("s_cmp_lt_u32 %s, 8" % s(sH))
    A("s_cselect_b32 %s, %d, %s" % (s(sRb + 1), 64 * 4096, s(sRb + 1)))
    for k in range(3):
        A("s_mov_b32 %s, %d" % (s(sRz + k), OOB))
    A("s_mov_b32 %s, %d" % (s(sPubK), OOB))
    A("v_mov_b32 %s, 0" % v(VA0 + 1))
    A("v_and_b32 %s, 7, %s" % (v(32), L))
    A("v_mul_u32_u24 %s, 1152, %s" % (v(32), v(32)))
    A("v_lshrrev_b32 %s, 3, %s" % (v(33), L))
    A("v_lshl_add_u32 %s, %s, 4, %s" % (v(32), v(33), v(32)))
    A("s_lshr_b32 %s, %s, 3" % (s(sT), s(sAo)))
    for j in range(3):
        A("buffer_load_dwordx4 %s, %s, %s, %s offen offset:%d" % (v(AR[j], 4), v(32), s(M0S, 4), s(sT), j * 128))
    lp = A.newlabel("Lpinit")
    A("s_mov_b32 %s, 0" % s(sSpin))
    A("v_mov_b32 v33, %d" % DBG_ARR)
    A.label(lp)
    A("buffer_load_dword v32, v33, %s, 0 offen sc1" % s(DBG, 4))
    A("s_add_u32 %s, %s, 1" % (s(sSpin), s(sSpin)))
    A("s_cmp_gt_u32 %s, %d" % (s(sSpin), SPIN_MAX))
    A("s_cbranch_scc1 Lchain_exit")
    A("s_waitcnt vmcnt(0)")
    A("v_readfirstlane_b32 %s, v32" % s(sSlow))
    A("s_and_b32 %s, %s, 0xffff" % (s(sT), s(sSlow)))
    A("s_cmp_lt_u32 %s, 128" % s(sT))
    A("s_cbranch_scc1 %s" % lp)
    A("v_add_u32 v32, %s, %s" % (s(sAo), v(vLX)))
    for j in range(3):
        A("ds_write_b128 v32, %s offset:%d" % (v(AR[j], 4), L_MEM - X0 + j * 1024))

    def kv_wait(r0):
        if not merged:
            return
        lw = A.newlabel("Lkvw")
        A("v_lshrrev_b32 %s, 2, %s" % (v(r0), v(vLX)))
        A("v_and_b32 %s, 31, %s" % (v(r0), v(r0)))
        A("s_mov_b32 %s, %d" % (s(sT2), WS_FLAG + F_KV * 128))
        A("s_mov_b32 %s, 0" % s(sSpin))
        A.label(lw)
        A("buffer_load_dword %s, %s, %s, %s offen sc1" % (v(r0 + 1), v(r0), s(WS, 4), s(sT2)))
        A("s_add_u32 %s, %s, 1" % (s(sSpin), s(sSpin)))
        A("s_cmp_gt_u32 %s, %d" % (s(sSpin), SPIN_MAX))
        A("s_cbranch_scc1 Lchain_exit")
        A("s_add_u32 %s, %s, 1" % (s(sT), s(sStep)))
        A("s_lshr_b32 %s, %s, 3" % (s(sT), s(sT)))
        A("s_min_u32 %s, %s, 7" % (s(sT), s(sT)))
        A("s_waitcnt vmcnt(0)")
        A("v_cmp_le_u32 vcc, 128, %s" % v(r0 + 1))
        A("s_bitcmp1_b32 vcc_lo, %s" % s(sT))
        A("s_cbranch_scc0 %s" % lw)
        A("s_cmp_eq_u64 vcc, exec")
        A("s_cselect_b32 %s, 1, 0" % s(sAll))
    def kv_dma(i):
        A.vm("buffer_load_dwordx4 %s, %s, %s offen offset:%d sc1 lds" % (v(vLX), s(WS, 4), s(sKV), i * 1024))
    A("s_mov_b32 %s, 0" % s(sStep))
    A("s_mov_b32 %s, %d" % (s(sIn1Z), OOB))
    A("s_mov_b32 %s, %d" % (s(sIn2Z), OOB))
    A("v_mov_b32 %s, 0" % v(vA))
    kv_wait(34)
    A("s_mov_b32 m0, %s" % s(sMK))
    A("s_nop 0")
    for i in range(4):
        kv_dma(i)
    G = [None, 10, 11]
    def zero(r, n=4):
        for k in range(0, n, 2):
            A("v_mov_b64 %s, 0" % v(r + k, 2))
    def pre_a():
        for q in range(4):
            rdres(("qk", 0, 1), q)
        for gi in (1, 2):
            A("v_add_u32 %s, %s, %s" % (v(G[gi]), s(sAo + 3 * gi), v(vLX)))
    def pre_s():
        A("s_and_b32 %s, %s, 1" % (s(sT), s(sStep)))
        A("s_mul_i32 %s, %s, %d" % (s(sT), s(sT), IN1_SLOT))
        A("s_add_u32 %s, %s, %d" % (s(sSt), s(sT), WS_IN1))
        for p in range(1, 5):
            A("s_add_u32 %s, %s, %d" % (s(sSt + p), s(sSt), p * 16384))
        A("s_add_u32 %s, %s, %s" % (s(sIn1R), s(sSt), s(sUo)))
        A("s_and_b32 %s, %s, 3" % (s(sT), s(sStep)))
        A("s_lshl_b32 %s, %s, 14" % (s(sT), s(sT)))
        A("s_add_u32 %s, %s, %d" % (s(sIn2W), s(sT), WS_IN2))
        A("s_add_u32 %s, %s, %d" % (s(sKV), s(sKV), 32 * 16384))
        A("s_sub_u32 %s, %s, %d" % (s(sWarm), s(sKV), 3 * X0))
        A("s_lshl_b32 %s, %s, 5" % (s(sT), s(sStep)))
        A("s_add_u32 %s, %s, %s" % (s(sT), s(sT), s(sH)))
        A("s_lshl_b32 %s, %s, 13" % (s(sT), s(sT)))
        A("s_add_u32 %s, %s, %d" % (s(sPub), s(sT), WS_KVM - X0))
        A("s_lshl_b32 %s, %s, 10" % (s(sT2), s(sW)))
        A("s_add_u32 %s, %s, %s" % (s(sPubV), s(sPub), s(sT2)))
        A("s_add_u32 %s, %s, 2048" % (s(sPubV), s(sPubV)))
    def pre_f():
        A("s_and_b32 %s, %s, 3" % (s(sT2), s(sStep)))
        A("s_xor_b32 %s, %s, 1" % (s(sT2), s(sT2)))
        A("s_cmp_ge_u32 %s, 60" % s(sStep))
        A("s_cselect_b32 %s, 0, %s" % (s(sT2), s(sT2)))
        A("s_or_b32 %s, %s, %s" % (s(sT2), s(sT2), s(sW)))
    pre_a()
    pre_s()
    pre_f()
    zero(T[0], 16)
    zero(VA1)
    A("v_lshlrev_b32 %s, 2, %s" % (v(VA0), v(vLX)))
    A("s_mov_b32 m0, %d" % L_DUMMY)
    if tot:
        A("s_memtime s[96:97]")
    if rt:
        A("s_memrealtime s[100:101]")
    if "acc" in X:
        for k in range(74, 84): A("s_mov_b32 s%d, 0" % k)
        A("s_memtime s[72:73]")
        A("s_waitcnt lgkmcnt(0)")
        A("s_mov_b32 s74, s72")
    A("s_waitcnt vmcnt(0) lgkmcnt(0)")
    A("s_cmp_ge_u32 %s, 0x10000" % s(sSlow))
    A("s_cbranch_scc1 Lstep_s")

    def cutp(name):
        if name in X:
            A("s_add_u32 %s, %s, 1" % (s(sStep), s(sStep)))
            A("s_nop 7")
            for gi in range(3):
                A("v_add_u32 %s, %s, %s" % (v([vA, 10, 11][gi]), s(sAo + 3 * gi), v(vLX)))
            A("v_lshlrev_b32 %s, 2, %s" % (v(VA0), v(vLX)))
            A("s_mov_b32 m0, %s" % s(sM0))
            A("s_waitcnt lgkmcnt(0)")
            A("s_cmp_lt_u32 %s, 63" % s(sStep))
            A("s_cbranch_scc1 Lstep" + sfx[0])
            A("s_branch Lfin")
    acc_on = "acc" in X
    def tick(k):
        if not acc_on: return
        A("s_memtime s[72:73]")
        A("s_waitcnt lgkmcnt(0)")
        A("s_sub_u32 s75, s72, s74")
        A("s_add_u32 s%d, s%d, s75" % (76 + k, 76 + k))
        A("s_mov_b32 s74, s72")
    def smf(acc, areg, breg):
        A("v_smfmac_f32_16x16x64_bf16 %s, %s, %s, %s" % (v(acc, 4), v(areg, 4), reg(breg, 8), v(vIdx)))
    def mf(acc, a, b, first):
        A("v_mfma_f32_16x16x32_bf16 %s, %s, %s, %s" % (v(acc, 4), v(a, 4), v(b, 4), "0" if first else v(acc, 4)))
    def mf16(acc, a, b, first):
        A("v_mfma_f32_16x16x16_bf16 %s, %s, %s, %s" % (v(acc, 4), v(a, 2), v(b, 2), "0" if first else v(acc, 4)))
    def cv(dst, base):
        A("v_cvt_pk_bf16_f32 %s, %s, %s" % (v(dst), v(base), v(base + 1)))
        A("v_cvt_pk_bf16_f32 %s, %s, %s" % (v(dst + 1), v(base + 2), v(base + 3)))

    def loop(sf, st_flags):
        sfx[0] = sf
        A(".p2align 6")
        A.label("Lstep" + sf)
        A.ds_n = 100; A.vm_n = 100
        nstamp[0] = 0; ncut[0] = 0
        stamp()
        tick(3)
        if acc_on:
            A("s_add_u32 s81, s81, %s" % s(sSpin))
        atk = {0: 0, 1: 0, 2: 0}
        def rdA(i):
            if i < 9:
                atk[i] = A.ds("ds_read_b128 %s, %s offset:%d" % (v(AR[i % 3], 4), v(G[i // 3]), L_MEM - X0 + (i % 3) * 1024))
            else:
                atk[i] = A.ds("ds_read_b128 %s, %s offset:%d" % (v(AR[i % 3], 4), v(vLX), L_MEM - X0 + (i - 9) * 1024))
        if "hoponly" in X:
            A("s_cmp_eq_u32 %s, %d" % (s(sStep), nsteps - 1))
            A("s_cbranch_scc1 Lfin")
            A("s_barrier")
            A("buffer_store_dword %s, %s, %s, %s offen %s" % (v(VA1), v(vA), s(WS, 4), s(sIn2Z), st_flags))
            for j in range(3):
                A("buffer_store_dwordx4 %s, %s, %s, %s offen %s" % (v(VA1, 4), v(vLX), s(WS, 4), s(sRz + j), st_flags))
            A("v_bfe_u32 %s, %s, 9, 1" % (v(vA), v(vLX)))
            A("v_mul_u32_u24 %s, 8188, %s" % (v(vA), v(vA)))
            A("v_sub_u32 %s, %s, %s" % (v(vA), v(vP1), v(vA)))
            A("s_waitcnt vmcnt(0)")
            for _ in range(16): A("s_nop 15")
            A("s_barrier")
            for p_ in range(4):
                A("buffer_store_dwordx2 %s, %s, %s, %s offen %s" % (v(T[0], 2), v(vP1), s(WS, 4), s(sSt + p_), st_flags))
                if "spread" in X: A("s_nop 11")
            A("buffer_store_dword %s, %s, %s, %s offen %s" % (v(T[0]), v(vA), s(WS, 4), s(sSt + 4), st_flags))
            A("s_branch Lhops" + sf)
        tbt = 0
        lflag = A.newlabel("Lflag"); lflagr = A.newlabel("Lflagr")
        A("s_cmp_eq_u32 %s, 0" % s(sT2))
        for j in range(9):
            need = atk[j]
            if j in res_qk:
                need = max(need, tbt)
            if need:
                A.wait_ds(need)
            b0 = regof[("qk", j, 0)]
            b1 = TB if j in res_qk else regof[("qk", j, 1)]
            nxt = ("qk", j + 2, 1) if (j in res_qk and j + 2 in res_qk) else None
            smf(T[2], AR[j % 3], b1)
            if nxt: rdres(nxt, 0); rdres(nxt, 1)
            smf(T[3], AR[j % 3], b1 + 8)
            if nxt: rdres(nxt, 2); tbt = rdres(nxt, 3)
            smf(T[0], AR[j % 3], b0)
            smf(T[1], AR[j % 3], b0 + 8)
            if j == 1:
                A("s_barrier")
                rdA(3)
            if j >= 1:
                rdA(j + 3)
            if j == 1:
                A("buffer_store_dwordx2 %s, %s, %s, %s offen sc1" % (v(VA0 + 2, 2), v(VA0 + 1), s(WS, 4), s(sPubK)))
            if j == 2 and "nowarm" not in X:
                A("buffer_load_dword %s, %s, %s offen sc1 lds" % (v(VA0), s(WS, 4), s(sWarm)))
                A("s_cbranch_scc1 %s" % lflag)
                A.label(lflagr)
            if j == 3:
                zero(VA0)
                A("buffer_store_dword %s, %s, %s, %s offen %s" % (v(VA1), v(vA), s(WS, 4), s(sIn2Z), st_flags))
            if 4 <= j <= 6:
                A("buffer_store_dwordx4 %s, %s, %s, %s offen %s" % (v(VA1, 4), v(vLX), s(WS, 4), s(sRz + j - 4), st_flags))
            if j == 7: zero(VA1)
        stamp()
        tk = {}
        def rdkx(t, ks, dst):
            tk[("x", t, ks)] = A.ds("ds_read_b128 %s, %s offset:%d" % (v(dst, 4), v(vLX), L_KX - X0 + (t * 4 + ks) * 1024))
        def vmm(kk, t):
            i = 9 + kk
            if t == 0:
                A.wait_ds(atk[i])
            smf(VA[t], AR[i % 3], regof[("v", kk)] + 8 * t)
        def drain_pair(ta, tb_, dst):
            for r in range(4):
                A("v_permlane32_swap_b32 %s, %s" % (v(ta + r), v(tb_ + r)))
            A("v_pk_add_f32 %s, %s, %s" % (v(ta, 2), v(ta, 2), v(tb_, 2)))
            A("v_pk_add_f32 %s, %s, %s" % (v(ta + 2, 2), v(ta + 2, 2), v(tb_ + 2, 2)))
            cv(dst, ta)
        rdkx(0, 0, TB); rdkx(1, 0, TB + 4); rdkx(0, 1, TB + 8); rdkx(1, 1, TB + 12)
        cutp("ca")
        drain_pair(T[2], T[3], T[3])
        cutp("cb")
        A.ds("ds_write_b64 %s, %s offset:%d" % (v(vEw), v(T[3], 2), L_QK - X0 + 512))
        drain_pair(T[0], T[1], T[1])
        wq = A.ds("ds_write_b64 %s, %s offset:%d" % (v(vEw), v(T[1], 2), L_QK - X0))
        cutp("cc")
        vmm(0, 0)
        rdkx(0, 2, T[0])
        vmm(0, 1)
        vmm(1, 0)
        vmm(1, 1)
        cutp("cd")
        A("s_cmp_eq_u32 %s, %d" % (s(sStep), nsteps - 1))
        A.wait_ds(wq)
        A("s_barrier")
        stamp()
        A("s_cbranch_scc1 Llast" + sf)
        last_state = (A.ds_n, dict(atk))
        SX0, SX1, SM = T[1], T[3], T[0]
        QF = [T[2], AR[0], AR[1], AR[2]]
        def rdq(ks):
            for x in range(2):
                tk[("q", ks)] = A.ds("ds_read_b64_tr_b16 %s, %s offset:%d" % (v(QF[ks] + 2 * x, 2), v(vQKr), ks * 512 + x * 64))
        def rdkm(ks, dst):
            for x in range(2):
                tk[("m", ks)] = A.ds("ds_read_b64_tr_b16 %s, %s offset:%d" % (v(dst + 2 * x, 2), v(vQKr), 2048 + ks * 512 + x * 64))
        rdq(0); rdq(1)
        smf(VA[0], AR[2], regof[("v", 2)])
        rdq(2)
        smf(VA[1], AR[2], regof[("v", 2)] + 8)
        rdq(3)
        A("v_add_u32 %s, %s, %s" % (v(vA), s(sW2k), v(vLX)))
        A.wait_ds(tk[("q", 0)])
        mf(SX0, TB, QF[0], True);       rdkx(1, 2, TB)
        mf(SX1, TB + 4, QF[0], True);   rdkx(0, 3, TB + 4)
        A.wait_ds(tk[("q", 1)])
        mf(SX0, TB + 8, QF[1], False);  rdkx(1, 3, TB + 8)
        mf(SX1, TB + 12, QF[1], False); rdkm(0, TB + 12)
        A.wait_ds(tk[("x", 1, 2)])
        mf(SX0, T[0], QF[2], False)
        mf(SX1, TB, QF[2], False);      rdkm(1, TB)
        A.wait_ds(tk[("x", 1, 3)])
        mf(SX0, TB + 4, QF[3], False);  rdkm(2, TB + 4)
        mf(SX1, TB + 8, QF[3], False);  rdkm(3, TB + 8)
        VF = [TB + 12, T[2]]
        ONE = TB
        m, m2, m3 = 10, 11, vA
        A.wait_ds(tk[("m", 1)])
        mf(SM, TB + 12, QF[0], True)
        mf(SM, TB, QF[1], False)
        rdA(12)
        A.wait_ds(tk[("m", 3)])
        mf(SM, TB + 4, QF[2], False)
        rdA(13)
        A("v_max3_f32 %s, %s, %s, %s" % (v(m2), v(SX0), v(SX0 + 1), v(SX0 + 2)))
        mf(SM, TB + 8, QF[3], False)
        rdA(14)
        A("v_max3_f32 %s, %s, %s, %s" % (v(m2), v(m2), v(SX0 + 3), v(SX1)))
        stamp()
        A("v_max3_f32 %s, %s, %s, %s" % (v(m2), v(m2), v(SX1 + 1), v(SX1 + 2)))
        for t in range(2):
            tk[("vf", t)] = A.ds("ds_read_b128 %s, %s offset:%d" % (v(VF[t], 4), v(vA), L_VX - X0 + t * 1024))
        A("v_max_f32 %s, %s, %s" % (v(m2), v(m2), v(SX1 + 3)))
        vmm(3, 0)
        vmm(3, 1)
        rdA(15)
        A("v_max3_f32 %s, %s, %s, %s" % (v(m2), v(m2), v(SM), v(SM + 1)))
        A("v_max3_f32 %s, %s, %s, %s" % (v(m), v(m2), v(SM + 2), v(SM + 3)))
        A("v_max3_f32 %s, %s, %s, %s" % (v(m2), v(m2), v(SM + 2), v(SM + 3)))
        vmm(4, 0)
        A("v_permlane32_swap_b32 %s, %s" % (v(m), v(m2)))
        A("v_max_f32 %s, %s, %s" % (v(m3), v(m), v(m2)))
        A("v_max_f32 %s, %s, %s" % (v(m2), v(m), v(m2)))
        vmm(4, 1)
        rdA(16)
        A("v_permlane16_swap_b32 %s, %s" % (v(m3), v(m2)))
        A("v_max_f32 %s, %s, %s" % (v(m), v(m3), v(m2)))
        A("v_mul_f32 %s, %s, %s" % (v(m), s(sC), v(m)))
        PX, PM = TB + 4, TB + 8
        cutp("ce")
        def fm(base):
            for r in (0, 2):
                A("v_pk_fma_f32 %s, %s, %s, %s op_sel_hi:[1,0,0] neg_lo:[0,0,1] neg_hi:[0,0,1]" % (v(base + r, 2), v(base + r, 2), s(sC, 2), v(m, 2)))
        def ex(r):
            A("v_exp_f32 %s, %s" % (v(r), v(r)))
        fm(SX0); fm(SX1); fm(SM)
        ex(SX0)
        vmm(5, 0)
        ex(SX0 + 1)
        vmm(5, 1)
        rdA(17)
        ex(SX0 + 2)
        vmm(6, 0)
        ex(SX0 + 3)
        vmm(6, 1)
        ex(SX1)
        vmm(7, 0)
        ex(SX1 + 1)
        vmm(7, 1)
        ex(SX1 + 2)
        vmm(8, 0)
        ex(SX1 + 3)
        vmm(8, 1)
        cutp("cf")
        cv(PX, SX0)
        cv(PX + 2, SX1)
        ex(SM)
        ex(SM + 1)
        LS = AR[0]
        VH = AR[1]
        OT = [T[1], T[3]]
        mf(OT[0], VF[0], PX, True)
        ex(SM + 2)
        mf(OT[1], VF[1], PX, True)
        ex(SM + 3)
        A("v_mov_b64 %s, %s" % (v(ONE, 2), s(sOne, 2)))
        A("v_mov_b64 %s, %s" % (v(ONE + 2, 2), s(sOne + 2, 2)))
        cv(VH, VA0)
        mf16(LS, ONE, PX, True)
        cv(PM, SM)
        mf16(LS, ONE, PX + 2, False)
        cv(VH + 2, VA1)
        mf16(LS, ONE + 2, PM, False)
        cutp("cg")
        OA = [VA0, VA1, T[0], AR[2]]
        OS = T[2]
        zero(OA[0])
        mf16(OT[0], VH, PM, False)
        zero(OA[1])
        mf16(OT[1], VH + 2, PM, False)
        zero(OA[2])
        if "nopubv" not in X: A.vm("buffer_store_dwordx4 %s, %s, %s, %s offen sc1" % (v(VH, 4), v(vLX), s(WS, 4), s(sPubV)))
        A("v_rcp_f32 %s, %s" % (v(LS), v(LS)))
        zero(OA[3])
        A("v_add_u32 %s, %s, %s" % (v(vA), s(sOo), v(vOb)))
        OF = [AR[1], T[1], T[3], AR[0]]
        OF0 = OF[0]
        for t in range(2):
            for r in (0, 2):
                A("v_pk_mul_f32 %s, %s, %s op_sel_hi:[1,0]" % (v(OT[t] + r, 2), v(OT[t] + r, 2), v(LS, 2)))
        cv(OF0, OT[0])
        cv(OF0 + 2, OT[1])
        wo_ = A.ds("ds_write_b128 %s, %s" % (v(vA), v(OF0, 4)))
        cutp("ch")
        R1, R2, R3 = ("wo", 1, 0), ("wo", 2, 1), ("wo", 3, 1)
        rt = {}
        def bfrag(p, pos):
            d = ("wo", p, pos // 2)
            if d in regof:
                return regof[d] + 8 * (pos % 2)
            A.wait_ds(rt[(d, pos % 2)])
            return TB + 8 * (pos % 2)
        rdres(R1, 0); rt[(R1, 0)] = rdres(R1, 1)
        smf(OA[0], OF0, bfrag(0, 0))
        rdres(R1, 2)
        A("v_add_u32 %s, %s, %s" % (v(10), s(sOo + 1), v(vOb)))
        smf(OA[2], OF0, bfrag(2, 0))
        rt[(R1, 1)] = rdres(R1, 3)
        A("v_add_u32 %s, %s, %s" % (v(11), s(sOo + 2), v(vOb)))
        smf(OA[3], OF0, bfrag(3, 0))
        A("v_add_u32 %s, %s, %s" % (v(vA), s(sOo + 3), v(vOb)))
        A("s_mov_b32 m0, %s" % s(sMK))
        smf(OA[1], OF0, bfrag(1, 0))
        A("s_barrier")
        stamp()
        ot = {}
        ot[1] = A.ds("ds_read_b128 %s, %s" % (v(OF[1], 4), v(10)))
        ot[2] = A.ds("ds_read_b128 %s, %s" % (v(OF[2], 4), v(11)))
        ot[3] = A.ds("ds_read_b128 %s, %s" % (v(OF[3], 4), v(vA)))
        h0 = A.ds("ds_read_b128 %s, %s" % (v(OF0, 4), v(vOrH)))
        rdres(R2, 0); rt[(R2, 0)] = rdres(R2, 1)
        dma_on = "nodma" not in X
        if dma_on: kv_dma(0); kv_dma(1)
        def ostore(acc, p):
            cv(acc, acc)
            A.vm("buffer_store_dwordx2 %s, %s, %s, %s offen %s" % (v(acc, 2), v(vP1), s(WS, 4), s(sSt + p), st_flags))
        A.wait_ds(ot[1])
        smf(OA[0], OF[1], bfrag(0, 1))
        A("v_mov_b64 %s, 0" % v(OS, 2))
        A.wait_ds(ot[2])
        smf(OA[0], OF[2], bfrag(0, 2))
        A("v_mov_b64 %s, 0" % v(OS + 2, 2))
        A.wait_ds(ot[3])
        smf(OA[0], OF[3], bfrag(0, 3))
        A("v_bfe_u32 %s, %s, 9, 1" % (v(vA), v(vLX)))
        smf(OA[1], OF[1], TB + 8)
        rdres(R2, 2); rt[(R2, 1)] = rdres(R2, 3)
        A("v_mul_u32_u24 %s, 8188, %s" % (v(vA), v(vA)))
        smf(OA[1], OF[2], bfrag(1, 2))
        if dma_on: kv_dma(2)
        A("v_sub_u32 %s, %s, %s" % (v(vA), v(vP1), v(vA)))
        smf(OA[1], OF[3], bfrag(1, 3))
        ostore(OA[0], 0)
        smf(OA[2], OF[1], bfrag(2, 1))
        smf(OA[3], OF[1], bfrag(3, 1))
        h1 = A.ds("ds_read_b128 %s, %s offset:1024" % (v(OF[1], 4), v(vOrH)))
        smf(OA[2], OF[2], bfrag(2, 2))
        rdres(R3, 0); rt[(R3, 0)] = rdres(R3, 1)
        ostore(OA[1], 1)
        smf(OA[2], OF[3], bfrag(2, 3))
        rdres(R3, 2); rt[(R3, 1)] = rdres(R3, 3)
        smf(OS, OF0, regof[("ws",)])
        if dma_on: kv_dma(3)
        A.wait_ds(h1)
        smf(OS, OF[1], regof[("ws",)] + 8)
        smf(OA[3], OF[2], bfrag(3, 2))
        ostore(OA[2], 2)
        smf(OA[3], OF[3], bfrag(3, 3))
        A("s_nop 1")
        A("v_permlane32_swap_b32 %s, %s" % (v(OS), v(OS + 2)))
        A("v_permlane32_swap_b32 %s, %s" % (v(OS + 1), v(OS + 3)))
        A("v_add_f32 %s, %s, %s" % (v(OS), v(OS), v(OS + 2)))
        A("v_add_f32 %s, %s, %s" % (v(OS + 1), v(OS + 1), v(OS + 3)))
        A("v_cvt_pk_bf16_f32 %s, %s, %s" % (v(OS), v(OS), v(OS + 1)))
        A("s_nop 0")
        ostore(OA[3], 3)
        A.vm("buffer_store_dword %s, %s, %s, %s offen %s" % (v(OS), v(vA), s(WS, 4), s(sSt + 4), st_flags))
        stamp()

        A.label("Lhops" + sf)
        tick(0)
        lhop2 = A.newlabel("Lhop2"); lw3 = A.newlabel("Lw3"); lnd = A.newlabel("Lnd")
        P = T[0]
        SEL = AR[0]
        D = AR[1]
        mx = AR[2]
        def pub_k():
            for j in range(2):
                A("ds_read_b128 %s, %s offset:%d" % (v(T[j], 4), v(vLX), L_QK + 2048 - X0 + j * 1024))
            A("s_waitcnt lgkmcnt(0)")
            for j in range(2):
                A("buffer_store_dwordx4 %s, %s, %s, %s offen offset:%d sc1" % (v(T[j], 4), v(vLX), s(WS, 4), s(sPub), j * 1024))
        A("ds_read_b128 %s, %s offset:%d" % (v(SEL, 4), v(vLX), L_SEL - X0))
        A("v_lshrrev_b32 %s, 2, %s" % (v(vA), v(vLX)))
        A("v_add_u32 %s, %d, %s" % (v(vA), L_CST - X0 // 4, v(vA)))
        A("ds_read_b32 %s, %s" % (v(vA), v(vA)))
        pre_a()
        A("s_mov_b32 %s, %s" % (s(sIn1Z), s(sIn1R)))
        A("s_add_u32 %s, %s, %s" % (s(sRz), s(sSt), s(sRb)))
        A("s_add_u32 %s, %s, %d" % (s(sRz + 1), s(sRz), 32 * 4096))
        A("s_add_u32 %s, %s, %s" % (s(sRz + 2), s(sRz), s(sRb + 1)))
        A("s_add_u32 %s, %s, %d" % (s(sPubK), s(sPub), X0 // 2))
        A("s_add_u32 %s, %s, %s" % (s(sH2), s(sIn2W), s(sU2)))
        A("s_xor_b32 %s, %s, %d" % (s(sIn2Z), s(sH2), 2 * IN2_SLOT))
        A("s_add_u32 %s, %s, %s" % (s(sIn2R), s(sIn2W), s(sAo)))
        A("s_sub_u32 %s, %s, %d" % (s(sIn2R), s(sIn2R), X0))
        A("s_add_u32 %s, %s, 1" % (s(sStep), s(sStep)))
        pre_s()
        A("v_mov_b64 %s, -1" % v(VA1, 2))
        A("v_mov_b64 %s, -1" % v(VA1 + 2, 2))
        A("s_mov_b32 m0, %s" % s(sM0))
        A("s_cmp_ge_u32 %s, %d" % (s(sUnit), 0 if "nohop" in X else 72))
        A("s_cbranch_scc1 %s" % lhop2)
        A("s_mov_b32 %s, 0" % s(sSpin))
        for _ in range(d1):
            A("s_nop 7")
        A("s_waitcnt lgkmcnt(0)")
        lp1 = A.newlabel("Lp1")
        A.label(lp1)
        for j in range(4):
            A("buffer_load_dwordx4 %s, %s, %s, %s offen offset:%d sc1" % (v(P + 4 * j, 4), v(vLX), s(WS, 4), s(sIn1Z), j * 1024))
        A("s_add_u32 %s, %s, 1" % (s(sSpin), s(sSpin)))
        A("s_cmp_gt_u32 %s, %d" % (s(sSpin), SPIN_MAX))
        A("s_cbranch_scc1 Lchain_exit")
        for j in range(4):
            A("s_waitcnt vmcnt(%d)" % (3 - j))
            mf(D, P + 4 * j, SEL, j == 0)
            if j == 0:
                A("v_max3_u32 %s, %s, %s, %s" % (v(mx), v(P), v(P + 1), v(P + 2)))
                A("v_max_u32 %s, %s, %s" % (v(mx), v(mx), v(P + 3)))
            else:
                A("v_max3_u32 %s, %s, %s, %s" % (v(mx), v(mx), v(P + 4 * j), v(P + 4 * j + 1)))
                A("v_max3_u32 %s, %s, %s, %s" % (v(mx), v(mx), v(P + 4 * j + 2), v(P + 4 * j + 3)))
        A("v_cmp_eq_u32 vcc, -1, %s" % v(mx))
        A("s_cbranch_vccnz %s" % lp1)
        A("s_nop 3")
        A("v_permlane32_swap_b32 %s, %s" % (v(D), v(D + 2)))
        A("v_permlane32_swap_b32 %s, %s" % (v(D + 1), v(D + 3)))
        A("v_pk_add_f32 %s, %s, %s" % (v(D, 2), v(D, 2), v(D + 2, 2)))
        A("v_cvt_pk_bf16_f32 %s, %s, %s" % (v(D), v(D), v(D + 1)))
        A("buffer_store_dword %s, %s, %s, %s offen %s" % (v(D), v(vA), s(WS, 4), s(sH2), st_flags))
        if prof:
            A("s_mov_b32 s86, %s" % s(sSpin))
        if acc_on:
            A("s_add_u32 s80, s80, %s" % s(sSpin))
        A.label(lhop2)
        tick(1)
        stamp()
        zero(T[0], 16)
        if merged:
            lkv = A.newlabel("Lkvok")
            A("s_add_u32 %s, %s, 1" % (s(sT), s(sStep)))
            A("s_and_b32 %s, %s, 7" % (s(sT), s(sT)))
            A("s_or_b32 %s, %s, %s" % (s(sT), s(sT), s(sAll)))
            A("s_cbranch_scc1 %s" % lkv)
            kv_wait(VA0)
            A.label(lkv)
        pre_f()
        A("v_lshrrev_b32 %s, 1, %s" % (v(VA0 + 1), v(vLX)))
        A("s_lshl_b32 %s, %s, 9" % (s(sT), s(sW)))
        A("v_add_u32 %s, %s, %s" % (v(VA0 + 1), s(sT), v(VA0 + 1)))
        A("ds_read_b64 %s, %s offset:%d" % (v(VA0 + 2, 2), v(VA0 + 1), L_QK + 2048 - X0 // 2))
        A("s_waitcnt lgkmcnt(0)")
        A("s_barrier")
        tick(2)
        if prof:
            A("s_lshl_b32 %s, %s, 2" % (s(sT), s(sH)))
            A("s_add_u32 %s, %s, %s" % (s(sT), s(sT), s(sW)))
            A("s_lshl_b32 %s, %s, 6" % (s(sT), s(sT)))
            A("s_add_u32 %s, %s, %s" % (s(sT), s(sT), s(sStep)))
            A("s_lshl_b32 %s, %s, 6" % (s(sT), s(sT)))
            A("s_add_u32 %s, %s, %d" % (s(sT), s(sT), WS_PROF))
            A("v_mov_b32 %s, 0" % v(AR[0] + 1))
            A("s_mov_b64 exec, 1")
            for k in range(nstamp[0]):
                A("v_mov_b32 %s, %s" % (v(AR[0]), s(sPT + 2 * k)))
                A("buffer_store_dword %s, %s, %s, %s offen offset:%d" % (v(AR[0]), v(AR[0] + 1), s(WS, 4), s(sT), 4 * k))
            A("v_mov_b32 %s, s86" % v(AR[0]))
            A("buffer_store_dword %s, %s, %s, %s offen offset:%d" % (v(AR[0]), v(AR[0] + 1), s(WS, 4), s(sT), 56))
            A("v_mov_b32 %s, s86" % v(AR[0]))
            A("buffer_store_dword %s, %s, %s, %s offen offset:%d" % (v(AR[0]), v(AR[0] + 1), s(WS, 4), s(sT), 60))
            A("s_mov_b64 exec, -1")
        else:
            for _ in range(d2):
                A("s_nop 7")
        if "nohop" in X:
            A("s_mov_b32 m0, %d" % L_DUMMY)
            A("s_branch Lstep" + sf)
        A("s_mov_b32 %s, 0" % s(sSpin))
        g0, c1, c2 = VA0, T[0], T[0] + 1
        Q = AR[0]
        A("v_add_u32 %s, %s, %s" % (v(g0), s(sAo), v(vLX)))
        lp2 = A.newlabel("Lp2")
        A.label(lp2)
        for j in range(3):
            A("buffer_load_dwordx4 %s, %s, %s offen offset:%d sc1 lds" % (v(vLX), s(WS, 4), s(sIn2R), j * 1024))
        A("s_add_u32 %s, %s, 1" % (s(sSpin), s(sSpin)))
        A("s_cmp_gt_u32 %s, %d" % (s(sSpin), SPIN_MAX))
        A("s_cbranch_scc1 Lchain_exit")
        for j in range(3):
            A("s_waitcnt vmcnt(%d)" % (2 - j))
            A("ds_read_b128 %s, %s offset:%d" % (v(AR[j], 4), v(g0), L_MEM - X0 + j * 1024))
        A("s_waitcnt lgkmcnt(2)")
        A("v_max3_u32 %s, %s, %s, %s" % (v(c1), v(Q), v(Q + 1), v(Q + 2)))
        A("s_waitcnt lgkmcnt(1)")
        A("v_max3_u32 %s, %s, %s, %s" % (v(c2), v(Q + 3), v(Q + 4), v(Q + 5)))
        A("v_max3_u32 %s, %s, %s, %s" % (v(c1), v(c1), v(Q + 6), v(Q + 7)))
        A("s_waitcnt lgkmcnt(0)")
        A("v_max3_u32 %s, %s, %s, %s" % (v(c2), v(c2), v(Q + 8), v(Q + 9)))
        A("v_max3_u32 %s, %s, %s, %s" % (v(c1), v(c1), v(Q + 10), v(Q + 11)))
        A("v_max_u32 %s, %s, %s" % (v(c1), v(c1), v(c2)))
        A("v_cmp_eq_u32 vcc, -1, %s" % v(c1))
        if prof:
            A("s_mov_b32 s86, %s" % s(sSpin))
        A("v_mov_b64 %s, 0" % v(c1, 2))
        A("s_cbranch_vccnz %s" % lp2)
        A("v_lshlrev_b32 %s, 2, %s" % (v(VA0), v(vLX)))
        A("s_mov_b32 m0, %d" % L_DUMMY)
        A("s_branch Lstep" + sf)

        A.label(lflag)
        A("s_sub_u32 %s, %s, 1" % (s(sT), s(sStep)))
        A("s_max_i32 %s, %s, 0" % (s(sT), s(sT)))
        A("v_mov_b32 %s, %s" % (v(VA0 + 2), s(sT)))
        A("v_mov_b32 %s, 0" % v(VA0 + 3))
        A("s_mov_b64 exec, 1")
        A("buffer_store_dword %s, %s, %s, %s offen sc1" % (v(VA0 + 2), v(VA0 + 3), s(WS, 4), s(sFl)))
        A("s_mov_b64 exec, -1")
        A("s_branch %s" % lflagr)
        A.label("Llast" + sf)
        A.ds_n, atk2 = last_state
        atk.clear(); atk.update(atk2)
        vmm(2, 0); vmm(2, 1)
        for kk in range(3, 9):
            rdA(9 + kk)
            vmm(kk, 0); vmm(kk, 1)
        A("s_nop 7")
        A("s_nop 1")
        cv(TB, VA0)
        cv(TB + 2, VA1)
        A("buffer_store_dwordx4 %s, %s, %s, %s offen sc1" % (v(TB, 4), v(vLX), s(WS, 4), s(sPubV)))
        A("s_cmp_lg_u32 %s, 3" % s(sW))
        A("s_cbranch_scc1 Lfin")
        pub_k()
        A("s_branch Lfin")
    loop("", "")
    loop("_s", "sc1")
    A.label("Lfin")
    if acc_on:
        A("s_lshl_b32 %s, %s, 2" % (s(sT), s(sH)))
        A("s_add_u32 %s, %s, %s" % (s(sT), s(sT), s(sW)))
        A("s_lshl_b32 %s, %s, 5" % (s(sT), s(sT)))
        A("s_add_u32 %s, %s, %d" % (s(sT), s(sT), WS_PROF))
        A("v_mov_b32 v11, 0")
        for k in range(6):
            A("v_mov_b32 v10, s%d" % (76 + k))
            A("buffer_store_dword v10, v11, %s, %s offen offset:%d" % (s(WS, 4), s(sT), 4 * k))
    A("s_waitcnt vmcnt(0)")
    A("s_barrier")
    A("s_cmp_lg_u32 %s, 0" % s(sW))
    A("s_cbranch_scc1 Lchain_exit")
    A("v_mov_b32 v10, %d" % nsteps)
    A("v_mov_b32 v11, 0")
    A("s_mov_b64 exec, 1")
    A("buffer_store_dword v10, v11, %s, %s offen sc1" % (s(WS, 4), s(sFl)))
    if tot:
        A("s_memtime s[92:93]")
        A("s_waitcnt lgkmcnt(0)")
        A("s_sub_u32 s92, s92, s96")
        A("v_mov_b32 v20, s92")
        A("s_lshl_b32 %s, %s, 3" % (s(sT), s(sH)))
        A("s_add_u32 %s, %s, %d" % (s(sT), s(sT), WS_PROF - 4096))
        A("s_sub_u32 s98, s96, s98")
        A("v_mov_b32 v21, s98")
        A("buffer_store_dwordx2 v[20:21], v11, %s, %s offen" % (s(WS, 4), s(sT)))
    if rt:
        A("s_memrealtime s[96:97]")
        A("s_lshl_b32 s99, s2, 6")
        A("s_add_u32 s99, s99, %d" % (WS_PROF + 0x10000))
        A("s_waitcnt lgkmcnt(0)")
        A("v_mov_b32 v22, s100")
        A("v_mov_b32 v23, s96")
        A("buffer_store_dwordx2 v[22:23], v11, %s, s99 offen offset:20" % s(WS, 4))
    A.label("Lchain_exit")
    A("s_endpgm")


def standalone(prof=False, slow=False, **kw):
    from gen_gemm1 import KD
    A = Asm()
    hdr = """; @launch kernel=chain_kernel grid=(256,1,1) block=(256,1,1) lds=163840
.amdgcn_target "amdgcn-amd-amdhsa--gfx950"
.text
.globl chain_kernel
.p2align 8
.type chain_kernel,@function
chain_kernel:
"""
    A("s_cmp_ge_u32 s2, 256")
    A("s_cbranch_scc1 Lchain_exit")
    A("s_load_dwordx4 s[20:23], s[0:1], 112")
    A("s_getreg_b32 s28, hwreg(HW_REG_XCC_ID)")
    A("s_and_b32 s28, s28, 15")
    if not slow:
        A("s_cmp_lg_u32 s28, 0")
        A("s_cbranch_scc1 Lchain_exit")
    A("s_cmp_lg_u32 s28, 0")
    A("s_cselect_b32 s27, 0x10000, 0")
    A("s_waitcnt lgkmcnt(0)")
    A("s_mov_b32 s4, s22")
    A("s_mov_b32 s5, s23")
    A("s_mov_b32 s6, %d" % WS_BYTES)
    A("s_mov_b32 s7, 0x00020000")
    A("s_mov_b32 s22, 256")
    A("s_mov_b32 s23, 0x00020000")
    A("v_mov_b32 v1, 1")
    A("v_mov_b32 v2, 0")
    A("v_cmp_eq_u32 vcc, 0, v0")
    A("s_and_saveexec_b64 s[30:31], vcc")
    A("s_cbranch_execz Lnoticket")
    A("buffer_atomic_add v1, v2, s[20:23], 0 offen offset:%d sc0" % DBG_T0)
    A("s_waitcnt vmcnt(0)")
    A("ds_write_b32 v2, v1")
    A("s_waitcnt lgkmcnt(0)")
    A.label("Lnoticket")
    A("s_mov_b64 exec, s[30:31]")
    A("s_barrier")
    A("ds_read_b32 v1, v2")
    A("s_waitcnt lgkmcnt(0)")
    A("v_readfirstlane_b32 s28, v1")
    A("s_barrier")
    A("s_cmp_ge_u32 s28, 32")
    A("s_cbranch_scc1 Lchain_exit")
    gen_chain(A, prof=prof, tot=True, merged=False, rt=True, **kw)
    return hdr + A.text() + '.section .rodata,"a"\n.p2align 6' + KD % "chain_kernel"

if __name__ == "__main__":
    import sys
    d1 = int(sys.argv[1]) if len(sys.argv) > 1 else 0
    d2 = int(sys.argv[2]) if len(sys.argv) > 2 else 0
    open("chain_p.s", "w").write(standalone(True, d1=d1, d2=d2))
    open("chain_np.s", "w").write(standalone(False, d1=d1, d2=d2))
    open("chain_slow.s", "w").write(standalone(False, slow=True))
    for i, X in enumerate(sys.argv[3:]):
        xs = X.split(",")
        dd = {k[:2]: int(k[2:]) for k in xs if k[:2] in ("d1", "d2")}
        open("chain_x%d.s" % i, "w").write(standalone(False, d1=dd.get("d1", d1), d2=dd.get("d2", d2), X=tuple(xs)))
```

```python
from asmlib import *
from layout import *

def f32(x):
    import struct
    return "0x%08x" % struct.unpack("<I", struct.pack("<f", x))[0]

def gemm1_setup(A):
    A("s_load_dwordx2 s[8:9], s[0:1], 0")
    A("s_load_dwordx4 s[36:39], s[0:1], 16")
    A("s_load_dwordx2 s[40:41], s[0:1], 32")
    A("s_load_dwordx4 s[44:47], s[0:1], 64")
    A("v_lshrrev_b32 v1, 6, v0")
    A("s_nop 0")
    A("v_readfirstlane_b32 s29, v1")
    A("v_and_b32 v1, 63, v0")
    A("s_waitcnt lgkmcnt(0)")
    A("s_mov_b32 s10, %d" % (2048 * 1152))
    A("s_mov_b32 s11, 0x00020000")
    A("s_mov_b32 s15, 0x00020000")
    A("s_mov_b32 s16, s46")
    A("s_mov_b32 s17, s47")
    A("s_mov_b32 s18, 9216")
    A("s_mov_b32 s19, 0x00020000")
    A("v_lshrrev_b32 v2, 3, v1")
    A("v_mul_u32_u24 v3, 1152, v2")
    A("v_lshrrev_b32 v4, 4, v1")
    A("s_and_b32 s31, s29, 1")
    A("s_lshl_b32 s31, s31, 2")
    A("v_add_u32 v4, s31, v4")
    A("v_and_b32 v5, 7, v1")
    A("v_xor_b32 v4, v4, v5")
    A("v_lshl_add_u32 v3, v4, 4, v3")
    A("s_mul_i32 s31, s29, %d" % (8 * 1152))
    A("v_add_u32 v2, s31, v3")
    A("v_lshrrev_b32 v4, 5, v1")
    A("s_lshl_b32 s31, s29, 1")
    A("v_or_b32 v5, s31, v4")
    A("v_lshlrev_b32 v5, 1, v5")
    A("v_and_b32 v6, 31, v1")
    A("v_xor_b32 v5, v5, v6")
    A("v_lshlrev_b32 v5, 4, v5")
    A("s_and_b32 s31, s29, 1")
    A("s_lshr_b32 s32, s29, 1")
    A("s_lshl_b32 s32, s32, 2")
    A("s_add_u32 s31, s31, s32")
    A("s_lshl_b32 s31, s31, 1")
    A("v_add_u32 v4, s31, v4")
    A("v_lshl_add_u32 v3, v4, 13, v5")
    A("v_mul_u32_u24 v4, 9216, v4")
    A("v_add_u32 v4, v4, v5")
    A("s_lshl_b32 s33, s31, 9")
    A("s_lshl_b32 s34, s29, 10")
    A("v_and_b32 v6, 15, v1")
    A("v_lshrrev_b32 v7, 4, v1")
    A("v_lshrrev_b32 v8, 1, v6")
    A("v_xor_b32 v8, v8, v7")
    A("v_lshlrev_b32 v8, 4, v8")
    A("v_lshl_add_u32 v8, v6, 7, v8")
    A("s_lshr_b32 s31, s29, 1")
    A("s_lshl_b32 s31, s31, 14")
    A("v_add_u32 v5, s31, v8")
    A("v_xor_b32 v6, 64, v5")
    A("v_bfe_u32 v8, v1, 2, 2")
    A("v_and_b32 v9, 1, v7")
    A("v_lshl_add_u32 v9, v9, 2, v8")
    A("v_lshl_add_u32 v8, v7, 3, v8")
    A("v_lshlrev_b32 v8, 9, v8")
    A("s_and_b32 s31, s29, 1")
    A("s_lshl_b32 s31, s31, 8")
    A("s_add_u32 s31, s31, 32768")
    A("v_add_u32 v8, s31, v8")
    A("v_and_b32 v10, 3, v1")
    for nt in range(8):
        A("v_xor_b32 v11, %d, v9" % nt)
        A("v_lshl_add_u32 v11, v11, 5, v8")
        A("v_lshl_add_u32 v%d, v10, 3, v11" % (16 + nt))
    A("v_lshrrev_b32 v12, 1, v10")
    A("v_and_b32 v13, 1, v10")
    A("v_lshlrev_b32 v13, 4, v13")
    for nt in range(8):
        p, t = nt // 2, nt % 2
        A("v_add_u32 v11, %d, v12" % (2 * p))
        A("v_xor_b32 v11, v11, v9")
        A("v_lshl_add_u32 v11, v11, 5, v8")
        A("v_add_u32 v11, v11, v13")
        A("v_add_u32 v%d, %d, v11" % (24 + nt, 8 * t))
    A("v_lshlrev_b32 v7, 4, v7")
    A("v_lshlrev_b32 v1, 4, v1")

FA = [64, 96]
FB = [128, 160]

def gemm1_decode(A, sTask, pre):
    A("s_and_b32 %s, %s, 7" % (s(pre + 4), s(sTask)))
    A("s_lshr_b32 %s, %s, 3" % (s(pre + 3), s(sTask)))
    A("s_mul_i32 %s, %s, %d" % (s(pre), s(pre + 4), 256 * 1152))
    A("s_lshr_b32 %s, %s, 4" % (s(pre + 2), s(pre + 3)))
    A("s_min_u32 %s, %s, 3" % (s(pre + 2), s(pre + 2)))
    A("s_lshl_b32 s31, %s, 4" % s(pre + 2))
    A("s_sub_u32 %s, %s, s31" % (s(pre + 3), s(pre + 3)))
    A("s_lshl_b32 %s, %s, 9" % (s(pre + 1), s(pre + 3)))

def gemm1_srd(A, pre):
    A("s_cmp_eq_u32 %s, 0" % s(pre + 2))
    A("s_cselect_b32 s12, s38, s40")
    A("s_cselect_b32 s13, s39, s41")
    A("s_cmp_eq_u32 %s, 2" % s(pre + 2))
    A("s_cselect_b32 s12, s36, s12")
    A("s_cselect_b32 s13, s37, s13")
    A("s_cmp_eq_u32 %s, 3" % s(pre + 2))
    A("s_cselect_b32 s12, s44, s12")
    A("s_cselect_b32 s13, s45, s13")
    A("s_movk_i32 s35, 8192")
    A("s_cselect_b32 s35, 9216, s35")
    A("s_mul_i32 s14, s35, 576")
    A("s_cselect_b64 vcc, -1, 0")
    A("v_cndmask_b32 v8, v3, v4, vcc")

def gemm1_dma(A, slot, sXo, sWo):
    last = None
    for j in range(8):
        A("s_add_u32 m0, s34, %d" % (slot * 65536 + j * 4096))
        A("s_add_u32 s31, %s, %d" % (s(sXo), j * 32 * 1152))
        last = A.vm("buffer_load_dwordx4 v2, s[8:11], s31 offen lds")
    for m in range(4):
        for j in range(2):
            rows = 4 * j + 16 * m
            A("s_add_u32 m0, s33, %d" % (slot * 65536 + 32768 + rows * 512))
            A("s_mul_i32 s31, s35, %d" % rows)
            A("s_add_u32 s31, s31, %s" % s(sWo))
            last = A.vm("buffer_load_dwordx4 v8, s[12:15], s31 offen lds")
    return last

def pstamp(A, on):
    if not on: return
    A("s_memtime s[90:91]")
    A("s_waitcnt lgkmcnt(0)")
    A("v_mov_b32 v250, s90")
    A("v_mov_b32 v251, s92")
    A("s_mov_b64 exec, 1")
    A("buffer_store_dword v250, v251, s[4:7], 0 offen")
    A("s_mov_b64 exec, -1")
    A("s_add_u32 s92, s92, 4")

def gemm1_body(A, next_task, done_label, publish=None, stf="", prof=False, flags=False):
    CUR, NXT = 50, 56
    sXo, sWo, sK = 62, 63, 64
    def rd(setn, slot, ks, typ):
        for mt in range(8):
            A.ds("ds_read_b128 %s, %s offset:%d" % (v(FA[setn] + 4 * mt, 4), v(5 + ks), slot * 0 + mt * 2048))
    A.c("=========== GEMM1 persistent loop ===========")
    if prof:
        A("s_lshl_b32 s92, s2, 2")
        A("s_add_u32 s92, s92, s29")
        A("s_lshl_b32 s92, s92, 8")
        A("s_add_u32 s92, s92, %d" % WS_PROF)
    pstamp(A, prof)
    if flags:
        A("s_mov_b32 s78, %d" % OOB)
    gemm1_decode(A, 48, NXT)
    gemm1_srd(A, NXT)
    def first_stages():
        A("s_mov_b32 %s, %s" % (s(sXo), s(NXT)))
        A("s_mov_b32 %s, %s" % (s(sWo), s(NXT + 1)))
        for st in range(2):
            gemm1_dma(A, st, sXo, sWo)
            A("s_add_u32 %s, %s, 128" % (s(sXo), s(sXo)))
            A("s_lshl_b32 s31, s35, 6")
            A("s_add_u32 %s, %s, s31" % (s(sWo), s(sWo)))
    first_stages()
    A("s_waitcnt vmcnt(16)")
    A.label("Lg1_task")
    for k in range(5):
        A("s_mov_b32 %s, %s" % (s(CUR + k), s(NXT + k)))
    A("s_cmp_eq_u32 %s, 1" % s(CUR + 2))
    A("s_cselect_b64 vcc, -1, 0")
    A("v_mov_b32 v32, v5")
    A("v_mov_b32 v33, v6")
    for nt in range(8):
        A("v_cndmask_b32 v%d, v%d, v%d, vcc" % (34 + nt, 24 + nt, 16 + nt))
    def reads(setn, ks):
        out = []
        for mt in range(8):
            out.append("ds_read_b128 %s, %s offset:%d" % (v(FA[setn] + 4 * mt, 4), v(32 + ks), mt * 2048))
        for nt in range(8):
            for x in range(2):
                out.append("ds_read_b64_tr_b16 %s, %s offset:%d" % (v(FB[setn] + 4 * nt + 2 * x, 2), v(34 + nt), ks * 16384 + x * 2048))
        return [out[0], out[8], out[9]] + out[10:24] + out[1:8]
    def flip():
        out = []
        for r in range(32, 42):
            out.append("v_xor_b32 v%d, 0x10000, v%d" % (r, r))
        return out
    def mm(setn, typ, first, fill):
        fill = list(fill)
        for mt in range(8):
            for nt in range(8):
                acc = a_((mt * 8 + nt) * 4, 4)
                x, w = v(FA[setn] + 4 * mt, 4), v(FB[setn] + 4 * nt, 4)
                a, b = (w, x) if typ == "T" else (x, w)
                A("v_mfma_f32_16x16x32_bf16 %s, %s, %s, %s" % (acc, a, b, "0" if first else acc))
                if fill:
                    f = fill.pop(0)
                    if callable(f): f()
                    else: A(f)
        assert not fill
    A("s_barrier")
    pstamp(A, prof)
    for r in reads(0, 0):
        A(r)
    A("s_mov_b32 %s, 0" % s(sK))
    A("s_cmp_eq_u32 %s, 1" % s(CUR + 2))
    A("s_cbranch_scc1 Lg1_N")
    for typ in ("T", "N"):
        L = "Lg1_" + typ
        A.label(L)
        A("s_waitcnt lgkmcnt(0)")
        mm(0, typ, True, reads(1, 1))
        A("s_branch %s_mid" % L)
        A.label(L + "_top")
        A("s_waitcnt lgkmcnt(0)")
        mm(0, typ, False, reads(1, 1))
        A.label(L + "_mid")
        A("s_cmp_eq_u32 %s, 8" % s(sK))
        A("s_cbranch_scc1 %s_last" % L)
        A("s_waitcnt vmcnt(0) lgkmcnt(0)")
        A("s_barrier")
        if flags:
            A("s_or_b32 s31, %s, s29" % s(sK))
            A("s_cbranch_scc0 %s_flag" % L)
            A.label(L + "_flagged")
        dm = Asm()
        A("s_and_b32 s32, %s, 1" % s(sK))
        A("s_lshl_b32 s32, s32, 16")
        A("s_add_u32 s65, s34, s32")
        A("s_add_u32 s66, s33, s32")
        A("s_cmp_ge_u32 %s, 7" % s(sK))
        A("s_cselect_b32 s67, %d, %s" % (OOB, s(sXo)))
        A("s_cselect_b32 s68, %d, %s" % (OOB, s(sWo)))
        base = flip() + reads(0, 0)
        dmas = []
        for j in range(8):
            def f(j=j):
                A("s_add_u32 m0, s65, %d" % (j * 4096))
                A("s_add_u32 s31, s67, %d" % (j * 32 * 1152))
                A("buffer_load_dwordx4 v2, s[8:11], s31 offen lds")
            dmas.append(f)
        for m in range(4):
            for j in range(2):
                def f(rows=4 * j + 16 * m):
                    A("s_add_u32 m0, s66, %d" % (32768 + rows * 512))
                    A("s_mul_i32 s31, s35, %d" % rows)
                    A("s_add_u32 s31, s31, s68")
                    A("buffer_load_dwordx4 v8, s[12:15], s31 offen lds")
                dmas.append(f)
        fill = []
        for k in range(64):
            if k % 4 == 0: fill.append(dmas.pop(0))
            elif base: fill.append(base.pop(0))
            else: fill.append(lambda: None)
        assert not base and not dmas
        mm(1, typ, False, fill)
        A("s_add_u32 %s, %s, 128" % (s(sXo), s(sXo)))
        A("s_lshl_b32 s31, s35, 6")
        A("s_add_u32 %s, %s, s31" % (s(sWo), s(sWo)))
        A("s_add_u32 %s, %s, 1" % (s(sK), s(sK)))
        A("s_branch %s_top" % L)
        A.label(L + "_last")
        A("s_waitcnt vmcnt(0) lgkmcnt(0)")
        A("s_barrier")
        mm(1, typ, False, [])
        A("s_branch Lg1_epi")
        if flags:
            A.label(L + "_flag")
            flag_add(A)
            A("s_branch %s_flagged" % L)
    A.label("Lg1_epi")
    pstamp(A, prof)
    next_task(A)
    A("s_cmp_ge_u32 s48, 528")
    A("s_cbranch_scc1 Lg1_nonext")
    gemm1_decode(A, 48, NXT)
    gemm1_srd(A, NXT)
    first_stages()
    A.label("Lg1_nonext")
    if flags:
        A("v_mov_b32 v253, %d" % DBG_ARR)
        A("buffer_load_dword v252, v253, s[20:23], 0 offen sc1")
    pstamp(A, prof)
    wm, wn = "s69", "s70"
    A("s_lshr_b32 s69, s29, 1")
    A("s_and_b32 s70, s29, 1")
    A("s_lshl_b32 s31, %s, 3" % s(CUR + 4))
    A("s_lshl_b32 s32, s69, 2")
    A("s_add_u32 s71, s31, s32")
    A("s_lshl_b32 s72, %s, 1" % s(CUR + 3))
    A("s_add_u32 s72, s72, s70")
    A("s_cmp_eq_u32 %s, 3" % s(CUR + 2))
    A("s_cbranch_scc1 Lg1_epiH")
    A("s_cmp_eq_u32 %s, 1" % s(CUR + 2))
    A("s_cbranch_scc1 Lg1_epiV")
    A("s_lshl_b32 s31, s71, 5")
    A("s_add_u32 s31, s31, s72")
    A("s_cmp_eq_u32 %s, 0" % s(CUR + 2))
    A("s_cselect_b32 s32, 14, 13")
    A("s_lshl_b32 s73, s31, s32")
    A("s_mov_b32 s31, %d" % WS_Q)
    A("s_cmp_eq_u32 %s, 0" % s(CUR + 2))
    A("s_cselect_b32 s31, %d, s31" % WS_KV)
    A("s_add_u32 s73, s73, s31")
    A("s_add_u32 s32, s32, 5")
    A("s_lshl_b32 s74, 1, s32")
    t = 192
    def pack(dst, ta, tb):
        for r in range(4):
            A("v_accvgpr_read_b32 v%d, a%d" % (t + r, ta * 4 + r))
        for r in range(4):
            A("v_accvgpr_read_b32 v%d, a%d" % (t + 4 + r, tb * 4 + r))
        for r in range(4):
            A("v_cvt_pk_bf16_f32 v%d, v%d, v%d" % (dst + r, t + 2 * r, t + 2 * r + 1))
    n = 0
    for mt in range(8):
        for p in range(4):
            dst = 200 + 4 * (n % 4); n += 1
            pack(dst, mt * 8 + 2 * p, mt * 8 + 2 * p + 1)
            if p == 0 and mt % 2 == 1:
                A("s_add_u32 s31, s73, 4096")
            A("buffer_store_dwordx4 %s, v1, s[4:7], %s offen offset:%d %s" % (v(dst, 4), "s73" if mt % 2 == 0 else "s31", p * 1024, stf))
        if mt % 2 == 1:
            A("s_add_u32 s73, s73, s74")
    A("s_branch Lg1_epi_done")
    A.label("Lg1_epiV")
    A("s_lshl_b32 s31, s71, 5")
    A("s_add_u32 s31, s31, s72")
    A("s_lshl_b32 s73, s31, 14")
    A("s_add_u32 s73, s73, %d" % (WS_KV + 8192))
    for sg in range(4):
        for nt in range(8):
            dst = 200 + 4 * (n % 4); n += 1
            pack(dst, (2 * sg) * 8 + nt, (2 * sg + 1) * 8 + nt)
            if nt == 4:
                A("s_add_u32 s31, s73, 4096")
            A("buffer_store_dwordx4 %s, v1, s[4:7], %s offen offset:%d %s" % (v(dst, 4), "s73" if nt < 4 else "s31", (nt % 4) * 1024, stf))
        A("s_add_u32 s73, s73, %d" % (32 * 16384))
    A("s_branch Lg1_epi_done")
    A.label("Lg1_epiH")
    A("s_lshl_b32 s31, s72, 8")
    for p in range(4):
        A("buffer_load_dwordx4 %s, v7, s[16:19], s31 offen offset:%d" % (v(200 + 4 * p, 4), p * 64))
    A("s_mul_i32 s73, s71, %d" % (2 * 144 * 1024))
    A("s_lshl_b32 s31, s72, 12")
    A("s_add_u32 s73, s73, s31")
    A("s_add_u32 s73, s73, %d" % WS_H)
    import math
    c1 = -2.0 * math.sqrt(2.0 / math.pi) * math.log2(math.e)
    A("s_mov_b32 s76, %s" % f32(c1 * 0.044715))
    A("s_mov_b32 s77, %s" % f32(c1 * 0.044715))
    A("v_mov_b32 v248, %s" % f32(c1))
    A("v_mov_b32 v249, %s" % f32(c1))
    A("s_waitcnt vmcnt(0)")
    for k in range(16):
        A("v_lshlrev_b32 v%d, 16, v%d" % (216 + 2 * k, 200 + k))
        A("v_and_b32 v%d, 0xffff0000, v%d" % (217 + 2 * k, 200 + k))
    u = 176
    for mt in range(8):
        for p in range(4):
            dst = 200 + 4 * (n % 4); n += 1
            ta, tb = mt * 8 + 2 * p, mt * 8 + 2 * p + 1
            for r in range(4):
                A("v_accvgpr_read_b32 v%d, a%d" % (t + r, ta * 4 + r))
            for r in range(4):
                A("v_accvgpr_read_b32 v%d, a%d" % (t + 4 + r, tb * 4 + r))
            for r in range(0, 8, 2):
                A("v_pk_add_f32 %s, %s, %s" % (v(t + r, 2), v(t + r, 2), v(216 + 8 * p + r, 2)))
            for r in range(0, 8, 2):
                A("v_pk_mul_f32 %s, %s, %s" % (v(u + r, 2), v(t + r, 2), v(t + r, 2)))
            for r in range(0, 8, 2):
                A("v_pk_fma_f32 %s, %s, s[76:77], v[248:249]" % (v(u + r, 2), v(u + r, 2)))
            for r in range(0, 8, 2):
                A("v_pk_mul_f32 %s, %s, %s" % (v(u + r, 2), v(u + r, 2), v(t + r, 2)))
            for r in range(8):
                A("v_exp_f32 v%d, v%d" % (u + r, u + r))
            for r in range(0, 8, 2):
                A("v_pk_add_f32 %s, %s, 1.0 op_sel_hi:[1,0]" % (v(u + r, 2), v(u + r, 2)))
            for r in range(8):
                A("v_rcp_f32 v%d, v%d" % (u + r, u + r))
            for r in range(0, 8, 2):
                A("v_pk_mul_f32 %s, %s, %s" % (v(t + r, 2), v(t + r, 2), v(u + r, 2)))
            for r in range(4):
                A("v_cvt_pk_bf16_f32 v%d, v%d, v%d" % (dst + r, t + 2 * r, t + 2 * r + 1))
            A("buffer_store_dwordx4 %s, v1, s[4:7], s73 offen offset:%d %s" % (v(dst, 4), p * 1024, stf))
        A("s_add_u32 s73, s73, %d" % (144 * 1024))
    A.label("Lg1_epi_done")
    pstamp(A, prof)
    if flags:
        A("s_sub_u32 s31, %s, 1" % s(CUR + 2))
        A("s_max_i32 s31, s31, 0")
        A("s_lshl_b32 s31, s31, 7")
        A("s_lshl_b32 s32, %s, 2" % s(CUR + 4))
        A("s_add_u32 s31, s31, s32")
        A("s_add_u32 s78, s31, %d" % WS_FLAG)
        lw = A.newlabel("Lg1fw"); lok = A.newlabel("Lg1fok")
        A("s_mov_b32 s32, 0")
        A("s_waitcnt vmcnt(32)")
        A.label(lw)
        A("v_readfirstlane_b32 s31, v252")
        A("s_and_b32 s31, s31, 0xffff")
        A("s_cmp_ge_u32 s31, 128")
        A("s_cbranch_scc1 %s" % lok)
        A("s_add_u32 s32, s32, 1")
        A("s_cmp_gt_u32 s32, %d" % (1 << 20))
        A("s_cbranch_scc1 Lexit")
        A("buffer_load_dword v252, v253, s[20:23], 0 offen sc1")
        A("s_waitcnt vmcnt(0)")
        A("s_branch %s" % lw)
        A.label(lok)
    A("s_cmp_ge_u32 s48, 528")
    A("s_cbranch_scc1 Lg1_done")
    A("s_waitcnt vmcnt(48)")
    A("s_branch Lg1_task")
    A.label("Lg1_done")
    if flags:
        A("s_waitcnt vmcnt(0)")
        A("s_barrier")
        A("s_cmp_lg_u32 s29, 0")
        A("s_cbranch_scc1 %s" % done_label)
        flag_add(A)
    A("s_branch %s" % done_label)

def flag_add(A, n=4):
    A("v_mov_b32 v254, %d" % n)
    A("v_mov_b32 v253, 0")
    A("s_mov_b64 exec, 1")
    A("buffer_atomic_add v254, v253, s[4:7], s78 offen")
    A("s_mov_b64 exec, -1")

def wait_word(A, sOff, need, vt=250, sleep=1, exit_label="Lexit", all8=False):
    lw = A.newlabel("Lww"); lok = A.newlabel("Lwok")
    if all8:
        A("v_and_b32 v%d, 7, v0" % vt)
        A("v_lshlrev_b32 v%d, 2, v%d" % (vt, vt))
    else:
        A("v_mov_b32 v%d, 0" % vt)
    A("s_mov_b32 s49, 0")
    A.label(lw)
    A("buffer_load_dword v%d, v%d, s[4:7], %s offen sc1" % (vt + 1, vt, sOff))
    A("s_add_u32 s49, s49, 1")
    A("s_cmp_gt_u32 s49, %d" % (1 << 20))
    A("s_cbranch_scc1 %s" % exit_label)
    A("s_waitcnt vmcnt(0)")
    A("v_cmp_gt_u32 vcc, %s, v%d" % (need, vt + 1))
    A("s_cbranch_vccz %s" % lok)
    A("s_sleep %d" % sleep)
    A("s_branch %s" % lw)
    A.label(lok)

KD = """
.amdhsa_kernel %s
  .amdhsa_next_free_vgpr 512
  .amdhsa_next_free_sgpr 102
  .amdhsa_accum_offset 256
  .amdhsa_group_segment_fixed_size 0
  .amdhsa_kernarg_size 128
  .amdhsa_user_sgpr_count 2
  .amdhsa_user_sgpr_kernarg_segment_ptr 1
  .amdhsa_system_sgpr_workgroup_id_x 1
.end_amdhsa_kernel
"""
def kernel_head(A, name):
    A.lines.append(".globl %s\n.p2align 8\n.type %s,@function\n%s:" % (name, name, name))
def ws_srd(A):
    A("s_load_dwordx4 s[20:23], s[0:1], 112")
    A("s_waitcnt lgkmcnt(0)")
    A("s_mov_b32 s4, s22")
    A("s_mov_b32 s5, s23")
    A("s_mov_b32 s6, %d" % WS_BYTES)
    A("s_mov_b32 s7, 0x00020000")
    A("s_mov_b32 s22, 256")
    A("s_mov_b32 s23, 0x00020000")

def gemm1_kernel(A, prof=False):
    kernel_head(A, "gemm1_kernel")
    A("s_cmp_ge_u32 s2, 256")
    A("s_cbranch_scc1 Lg1_exit")
    ws_srd(A)
    gemm1_setup(A)
    A("s_and_b32 s31, s2, 7")
    A("s_lshr_b32 s32, s2, 6")
    A("s_lshl_b32 s32, s32, 3")
    A("s_add_u32 s31, s31, s32")
    A("s_lshl_b32 s31, s31, 3")
    A("s_bfe_u32 s32, s2, 0x30003")
    A("s_add_u32 s48, s31, s32")
    def nxt(A):
        A("s_add_u32 s48, s48, 256")
    gemm1_body(A, nxt, "Lg1_exit", prof=prof)
    A.label("Lg1_exit")
    A("s_endpgm")

if __name__ == "__main__":
    import sys
    A = Asm()
    gemm1_kernel(A, prof=len(sys.argv) > 1)
    txt = """; @launch kernel=gemm1_kernel grid=(256,1,1) block=(256,1,1) lds=163840
.amdgcn_target "amdgcn-amd-amdhsa--gfx950"
.text
""" + A.text() + '.section .rodata,"a"\n.p2align 6\n' + KD % "gemm1_kernel"
    open("gemm1.s", "w").write(txt)
```

```python
from asmlib import *
from layout import *

def t0_task(A, sTask, stf="sc1"):
    A.c("=========== T0 task ===========")
    A("s_load_dwordx2 s[8:9], s[0:1], 0")
    A("s_load_dwordx4 s[36:39], s[0:1], 24")
    A("v_lshrrev_b32 v1, 6, v0")
    A("s_nop 0")
    A("v_readfirstlane_b32 s29, v1")
    A("v_and_b32 v1, 63, v0")
    A("s_and_b32 s30, %s, 31" % s(sTask))
    A("s_bfe_u32 s31, %s, 0x10005" % s(sTask))
    A("s_lshr_b32 s32, %s, 6" % s(sTask))
    A("s_lshl_b32 s32, s32, 2")
    A("s_add_u32 s32, s32, s29")
    A("s_waitcnt lgkmcnt(0)")
    A("s_cmp_eq_u32 s31, 0")
    A("s_cselect_b32 s12, s36, s38")
    A("s_cselect_b32 s13, s37, s39")
    A("s_mov_b32 s14, %d" % (576 * 8192))
    A("s_mov_b32 s15, 0x00020000")
    A("s_mov_b32 s10, %d" % (2048 * 1152))
    A("s_mov_b32 s11, 0x00020000")
    A("v_lshrrev_b32 v2, 4, v1")
    A("s_and_b32 s33, s29, 1")
    A("s_lshl_b32 s34, s33, 2")
    A("v_or_b32 v3, s34, v2")
    A("v_lshlrev_b32 v3, 1, v3")
    A("v_and_b32 v4, 15, v1")
    A("v_xor_b32 v3, v3, v4")
    A("v_lshlrev_b32 v3, 4, v3")
    A("v_lshl_add_u32 v3, v2, 13, v3")
    A("s_lshl_b32 s33, s33, 1")
    A("s_lshr_b32 s34, s29, 1")
    A("s_add_u32 s33, s33, s34")
    A("s_lshl_b32 s34, s33, 10")
    A("s_lshl_b32 s33, s33, 15")
    A("s_lshl_b32 s35, s30, 8")
    A("s_add_u32 s33, s33, s35")
    A("v_mul_u32_u24 v5, 1152, v4")
    A("v_lshl_add_u32 v5, v2, 4, v5")
    A("s_mul_i32 s35, s32, %d" % (32 * 1152))
    A("s_add_u32 s40, s35, %d" % (16 * 1152))
    XF = 64
    NP = 3
    tk = []
    for part in range(NP):
        for m in range(12 * part, 12 * part + 12):
            A("s_add_u32 m0, s34, %d" % (m * 4096))
            A("s_add_u32 s41, s33, %d" % (m * 16 * 8192))
            A.vm("buffer_load_dwordx4 v3, s[12:15], s41 offen lds")
        if part < 2:
            for ks in range(9 * part, 9 * part + 9):
                for mt in range(2):
                    A.vm("buffer_load_dwordx4 %s, v5, s[8:11], %s offen offset:%d" % (v(XF + 8 * ks + 4 * mt, 4), "s35" if mt == 0 else "s40", ks * 64))
        tk.append(A.vm_n)
    A("v_bfe_u32 v6, v1, 2, 2")
    A("v_and_b32 v7, 1, v2")
    A("v_lshl_add_u32 v7, v7, 2, v6")
    A("v_lshl_add_u32 v6, v2, 3, v6")
    A("v_lshlrev_b32 v6, 8, v6")
    A("v_and_b32 v8, 3, v1")
    A("v_lshrrev_b32 v9, 1, v8")
    A("v_and_b32 v10, 1, v8")
    A("v_lshlrev_b32 v10, 4, v10")
    A("s_cmp_eq_u32 s31, 1")
    A("s_cselect_b64 vcc, -1, 0")
    for nt in range(8):
        A("v_xor_b32 v11, %d, v7" % nt)
        A("v_lshl_add_u32 v11, v11, 5, v6")
        A("v_lshl_add_u32 v11, v8, 3, v11")
        A("v_add_u32 v12, %d, v9" % (2 * (nt // 2)))
        A("v_xor_b32 v12, v12, v7")
        A("v_lshl_add_u32 v12, v12, 5, v6")
        A("v_add3_u32 v12, v12, v10, %d" % (8 * (nt % 2)))
        A("v_cndmask_b32 v%d, v12, v11, vcc" % (16 + nt))
    A("v_lshlrev_b32 v1, 4, v1")
    WF = [208, 24]
    def rd(ks):
        for nt in range(8):
            for x in range(2):
                A("ds_read_b64_tr_b16 %s, v%d offset:%d" % (v(WF[ks % 2] + 4 * nt + 2 * x, 2), 16 + nt, (ks % 6) * 8192 + x * 1024))
    lV = A.newlabel("Lt0V"); lE = A.newlabel("Lt0E")
    A("s_cbranch_scc1 %s" % lV)
    for typ in ("T", "N"):
        if typ == "N":
            A.label(lV)
        for part in range(NP):
            A("s_waitcnt vmcnt(%d)" % min(63, tk[-1] - tk[part]))
            A("s_barrier")
            if part:
                for nt in range(8):
                    A("v_add_u32 v%d, %d, v%d" % (16 + nt, 6 * 8192, 16 + nt))
            rd(6 * part)
            for ks in range(6 * part, 6 * part + 6):
                A("s_waitcnt lgkmcnt(0)")
                if ks % 6 != 5:
                    rd(ks + 1)
                for mt in range(2):
                    for nt in range(8):
                        acc = a_((mt * 8 + nt) * 4, 4)
                        x_, w_ = v(XF + 8 * ks + 4 * mt, 4), v(WF[ks % 2] + 4 * nt, 4)
                        a, b = (w_, x_) if typ == "T" else (x_, w_)
                        A("v_mfma_f32_16x16x32_bf16 %s, %s, %s, %s" % (acc, a, b, "0" if ks == 0 else acc))
        A("s_lshl_b32 s33, s32, 5")
        A("s_add_u32 s33, s33, s30")
        A("s_lshl_b32 s33, s33, 14")
        A("s_add_u32 s33, s33, %d" % (WS_KV + (0 if typ == "T" else 8192)))
        A("s_add_u32 s34, s33, 4096")
        A("s_nop 3")
        for k in range(8):
            ta, tb = ((k // 4) * 8 + 2 * (k % 4), (k // 4) * 8 + 2 * (k % 4) + 1) if typ == "T" else (k, 8 + k)
            t = 64 + 12 * k
            for r in range(4):
                A("v_accvgpr_read_b32 v%d, a%d" % (t + r, ta * 4 + r))
                A("v_accvgpr_read_b32 v%d, a%d" % (t + 4 + r, tb * 4 + r))
            for r in range(4):
                A("v_cvt_pk_bf16_f32 v%d, v%d, v%d" % (t + 8 + r, t + 2 * r, t + 2 * r + 1))
            A("buffer_store_dwordx4 %s, v1, s[4:7], %s offen offset:%d %s" % (v(t + 8, 4), "s33" if k < 4 else "s34", (k % 4) * 1024, stf))
        if typ == "T":
            A("s_branch %s" % lE)
    A.label(lE)
```

```python
from asmlib import *
from layout import *
import math

def t2_role(A, sRole, wait_inputs=None, wait_chain=None, wait_base=None, ldf="sc1"):
    A.c("=========== T2 role ===========")
    A("s_load_dwordx2 s[12:13], s[0:1], 40")
    A("s_load_dwordx2 s[16:17], s[0:1], 104")
    A("v_lshrrev_b32 v1, 6, v0")
    A("s_nop 0")
    A("v_readfirstlane_b32 s29, v1")
    A("v_and_b32 v1, 63, v0")
    A("s_mul_i32 s30, %s, 171" % s(sRole))
    A("s_lshr_b32 s30, s30, 9")
    assert all((x * 171) >> 9 == x // 3 for x in range(192))
    A("s_mul_i32 s31, s30, 3")
    A("s_sub_u32 s31, %s, s31" % s(sRole))
    A("s_lshr_b32 s36, s30, 3")
    A("s_and_b32 s30, s30, 7")
    A("s_lshl_b32 s37, s30, 2")
    A("s_add_u32 s37, s37, s29")
    A("s_waitcnt lgkmcnt(0)")
    A("s_mov_b32 s14, %d" % (4096 * 1152))
    A("s_mov_b32 s15, 0x00020000")
    A("s_mov_b32 s18, %d" % (2048 * 1152))
    A("s_mov_b32 s19, 0x00020000")
    for i in range(3):
        A("v_add_u32 v8, %d, v1" % (64 * i))
        A("v_mul_u32_u24 v9, 171, v8")
        A("v_lshrrev_b32 v9, 12, v9")
        A("v_mul_u32_u24 v10, 24, v9")
        A("v_sub_u32 v10, v8, v10")
        A("v_mul_u32_u24 v9, 1152, v9")
        A("v_lshl_add_u32 v%d, v10, 4, v9" % (2 + i))
    assert all((x * 171) >> 12 == x // 24 for x in range(192))
    A("s_mul_i32 s32, s29, 24576")
    A("s_mul_i32 s33, s37, 147456")
    A("s_mul_i32 s34, s31, 384")
    A("s_add_u32 s33, s33, s34")
    A("v_lshrrev_b32 v9, 4, v1")
    A("v_bfe_u32 v10, v1, 2, 2")
    A("v_and_b32 v11, 3, v1")
    A("v_lshl_add_u32 v12, v9, 2, v10")
    A("v_mul_u32_u24 v12, 384, v12")
    A("v_lshl_add_u32 v12, v11, 4, v12")
    A("v_add_u32 v8, s32, v12")
    for half in range(2):
        for b in range(8):
            for i in range(3):
                A("s_add_u32 m0, s32, %d" % (b * 3072 + i * 1024))
                A("s_add_u32 s34, s33, %d" % ((64 * half + 8 * b) * 1152))
                A("buffer_load_dwordx4 v%d, s[12:15], s34 offen lds" % (2 + i))
        A("s_waitcnt vmcnt(0)")
        for ks in range(2):
            for nt in range(12):
                for x in range(2):
                    A("ds_read_b64_tr_b16 %s, v8 offset:%d" % (a_(((2 * half + ks) * 12 + nt) * 4 + 2 * x, 2), (32 * ks + 16 * x) * 384 + (nt // 2) * 64 + (nt % 2) * 8))
            A("s_waitcnt lgkmcnt(0)")
    LKM = 98304
    LTK = LKM + 8192
    A("v_lshl_add_u32 v12, v9, 3, v10")
    A("v_lshlrev_b32 v12, 4, v12")
    A("v_and_b32 v13, 1, v1")
    A("v_lshl_add_u32 v12, v13, 3, v12")
    A("s_lshl_b32 s41, s29, 11")
    A("s_add_u32 s41, s41, %d" % LKM)
    A("v_add_u32 v2, s41, v12")
    A("v_and_b32 v12, 15, v1")
    for r in range(4):
        A("v_lshl_add_u32 v13, v9, 2, %d" % r)
        A("v_cmp_le_u32 %s, v13, v12" % s(50 + 2 * r, 2))
    A("v_mul_u32_u24 v3, 1152, v12")
    A("v_lshl_add_u32 v3, v9, 4, v3")
    A("v_lshlrev_b32 v4, 2, v12")
    A("v_lshlrev_b32 v1, 4, v1")
    A("v_mov_b32 v6, 0x3f803f80")
    A("v_mov_b32 v7, 0x3f803f80")
    A("v_mov_b32 v8, 0x3f003f00")
    A("v_mov_b32 v9, 0x3f003f00")
    A("v_mov_b32 v5, 0xff800000")
    A("v_add_u32 v14, s32, v1")
    A("s_mul_i32 s33, s29, 6144")
    A("v_add_u32 v15, s33, v1")
    A("v_add_u32 v13, 49152, v15")
    A("s_mov_b32 s42, 0x3e0293ee")
    A("s_lshr_b32 s46, s29, 1")
    A("s_and_b32 s47, s29, 1")
    A("s_lshl_b32 s33, s31, 1")
    A("s_add_u32 s47, s47, s33")
    QF, KF, VF, KM, VM = 64, 96, 128, 160, 256 + 240
    S, P, OT, OF, LS, KT = 192, 204, 212, 16, 244, 52
    ACC = 256 + 192
    def mf(acc, a, b, first):
        A("v_mfma_f32_16x16x32_bf16 %s, %s, %s, %s" % (reg(acc, 4), reg(a, 4), reg(b, 4), "0" if first else reg(acc, 4)))
    def mf16(acc, a, b, first):
        A("v_mfma_f32_16x16x16_bf16 %s, %s, %s, %s" % (reg(acc, 4), reg(a, 2), reg(b, 2), "0" if first else reg(acc, 4)))
    def cv(dst, base):
        A("v_cvt_pk_bf16_f32 %s, %s, %s" % (v(dst), v(base), v(base + 1)))
        A("v_cvt_pk_bf16_f32 %s, %s, %s" % (v(dst + 1), v(base + 2), v(base + 3)))
    def load_qkv(sSeg):
        A("s_lshl_b32 s33, %s, 5" % s(sSeg))
        A("s_add_u32 s33, s33, s37")
        A("s_lshl_b32 s34, s33, 13")
        A("s_add_u32 s34, s34, %d" % WS_Q)
        A("s_lshl_b32 s33, s33, 14")
        A("s_add_u32 s33, s33, %d" % WS_KV)
        for j in range(8):
            if j == 4: A("s_add_u32 s34, s34, 4096")
            A("buffer_load_dwordx4 %s, v1, s[4:7], s34 offen offset:%d %s" % (v(QF + 4 * j, 4), (j % 4) * 1024, ldf))
        for j in range(16):
            if j and j % 4 == 0: A("s_add_u32 s33, s33, 4096")
            A("buffer_load_dwordx4 %s, v1, s[4:7], s33 offen offset:%d %s" % (v(KF + 4 * j, 4), (j % 4) * 1024, ldf))
    def load_kvm(sSeg):
        A("s_lshl_b32 s35, %s, 5" % s(sSeg))
        A("s_add_u32 s35, s35, s37")
        A("s_lshl_b32 s35, s35, 13")
        A("s_add_u32 s35, s35, %d" % WS_KVM)
        for j in range(2):
            A("buffer_load_dwordx4 %s, v1, s[4:7], s35 offen offset:%d %s" % (v(KT + 4 * j, 4), j * 1024, ldf))
        A("s_add_u32 s35, s35, 2048")
        for j in range(4):
            A("buffer_load_dwordx4 %s, v1, s[4:7], s35 offen offset:%d %s" % (reg(VM + 4 * j, 4), j * 1024, ldf))
    if wait_inputs: wait_inputs(A)
    A("s_barrier")
    load_qkv(36)
    A("s_mov_b32 s45, 0")
    A.label("Lt2_seg")
    lhave = A.newlabel("Lt2have")
    A("s_cmp_eq_u32 s45, 1")
    A("s_cbranch_scc1 %s" % lhave)
    if wait_chain: wait_chain(A)
    load_kvm(36)
    A.label(lhave)
    A("v_add_u32 v10, s41, v1")
    A("s_waitcnt vmcnt(4)")
    for j in range(2):
        A("ds_write_b128 v10, %s offset:%d" % (v(KT + 4 * j, 4), j * 1024))
    A("s_waitcnt lgkmcnt(0)")
    for ks in range(4):
        for x in range(2):
            A("ds_read_b64_tr_b16 %s, v2 offset:%d" % (v(KM + 4 * ks + 2 * x, 2), ks * 512 + x * 64))
    A("s_waitcnt vmcnt(0) lgkmcnt(0)")
    for qt in range(2):
        SM, SX0, SX1 = S, S + 4, S + 8
        for ks in range(4):
            mf(SM, KM + 4 * ks, QF + 16 * qt + 4 * ks, ks == 0)
            mf(SX0, KF + 4 * ks, QF + 16 * qt + 4 * ks, ks == 0)
            if qt == 1:
                mf(SX1, KF + 16 + 4 * ks, QF + 16 * qt + 4 * ks, ks == 0)
        if qt == 1:
            for k in range(12):
                A("ds_write_b128 v14, %s offset:%d" % (reg(ACC + 4 * k, 4), k * 1024))
        else:
            A("s_nop 7")
        diag = SX0 if qt == 0 else SX1
        for r in range(4):
            A("v_cndmask_b32 %s, v5, %s, %s" % (v(diag + r), v(diag + r), s(50 + 2 * r, 2)))
        A("v_max3_f32 v10, %s, %s, %s" % (v(SM), v(SM + 1), v(SM + 2)))
        A("v_max3_f32 v10, v10, %s, %s" % (v(SM + 3), v(SX0)))
        A("v_max3_f32 v10, v10, %s, %s" % (v(SX0 + 1), v(SX0 + 2)))
        if qt == 1:
            A("v_max3_f32 v10, v10, %s, %s" % (v(SX1), v(SX1 + 1)))
            A("v_max3_f32 v10, v10, %s, %s" % (v(SX1 + 2), v(SX1 + 3)))
        A("v_max_f32 v10, v10, %s" % v(SX0 + 3))
        for sw in ("v_permlane32_swap_b32", "v_permlane16_swap_b32"):
            A("v_mov_b32 v11, v10")
            A("s_nop 1")
            A("%s v10, v11" % sw)
            A("v_max_f32 v10, v10, v11")
        A("v_mul_f32 v10, s42, v10")
        n = 12 if qt == 1 else 8
        for r in range(0, n, 2):
            A("v_pk_fma_f32 %s, %s, s[42:43], v[10:11] op_sel_hi:[1,0,0] neg_lo:[0,0,1] neg_hi:[0,0,1]" % (v(S + r, 2), v(S + r, 2)))
        for r in range(n):
            A("v_exp_f32 %s, %s" % (v(S + r), v(S + r)))
        PX, PM = P, P + 4
        cv(PM, SM)
        cv(PX, SX0)
        if qt == 1:
            cv(PX + 2, SX1)
        A("s_nop 1")
        mf16(LS, 8, PM, True)
        mf16(LS, 6, PX, False)
        if qt == 1:
            mf16(LS, 6, PX + 2, False)
        for et in range(8):
            mf16(OT + 4 * et, VM + 2 * et, PM, True)
        for et in range(8):
            if qt == 1: mf(OT + 4 * et, VF + 4 * et, PX, False)
            else: mf16(OT + 4 * et, VF + 4 * et, PX, False)
        A("v_rcp_f32 %s, %s" % (v(LS), v(LS)))
        if qt == 1:
            lnp = A.newlabel("Lt2np")
            A("s_add_u32 s40, s36, 8")
            A("s_mov_b32 s45, 0")
            A("s_cmp_ge_u32 s40, 64")
            A("s_cbranch_scc1 %s" % lnp)
            load_qkv(40)
            if wait_chain:
                A("s_cmp_gt_u32 s44, s40")
                A("s_cbranch_scc0 %s" % lnp)
                A("s_mov_b32 s45, 1")
                load_kvm(40)
            A.label(lnp)
            A("s_nop 1")
        else:
            A("s_nop 4")
        for r in range(0, 32, 2):
            A("v_pk_mul_f32 %s, %s, %s op_sel_hi:[1,0]" % (v(OT + r, 2), v(OT + r, 2), v(LS, 2)))
        for et in range(8):
            cv(OF + 2 * et, OT + 4 * et)
        A("s_waitcnt lgkmcnt(0)")
        A("s_nop 0")
        for ks in range(4):
            for nt in range(12):
                mf(ACC + nt * 4, 256 + (ks * 12 + nt) * 4, OF + 4 * ks, ks == 0)
    A("s_mul_i32 s34, s36, 6")
    A("s_add_u32 s34, s34, s47")
    A("s_mul_i32 s35, s34, %d" % (8 * 12288))
    A("s_mul_i32 s33, s46, 6144")
    A("s_add_u32 s35, s35, s33")
    A("s_add_u32 s35, s35, %d" % WS_PART)
    A("s_mul_i32 s38, s30, 12288")
    A("s_add_u32 s38, s38, s35")
    A("s_add_u32 s39, s38, 4096")
    for k in range(12):
        A("ds_write_b128 v14, %s offset:%d" % (reg(ACC + 4 * k, 4), 12288 + k * 1024))
    A("s_waitcnt lgkmcnt(0)")
    A("s_barrier")
    R = 160
    for sw in range(4):
        for k in range(6):
            A("ds_read_b128 %s, %s offset:%d" % (v(R + 24 * sw + 4 * k, 4), "v15" if sw < 2 else "v13", (sw % 2) * 24576 + k * 1024))
    A("s_waitcnt lgkmcnt(0)")
    for r in range(0, 24, 2):
        A("v_pk_add_f32 %s, %s, %s" % (v(R + r, 2), v(R + r, 2), v(R + 24 + r, 2)))
        A("v_pk_add_f32 %s, %s, %s" % (v(R + 48 + r, 2), v(R + 48 + r, 2), v(R + 72 + r, 2)))
        A("v_pk_add_f32 %s, %s, %s" % (v(R + r, 2), v(R + r, 2), v(R + 48 + r, 2)))
    for k in range(6):
        A("buffer_store_dwordx4 %s, v1, s[4:7], %s offen offset:%d sc1" % (v(R + 4 * k, 4), "s38" if k < 4 else "s39", (k % 4) * 1024))
    A("s_waitcnt vmcnt(0)")
    A("s_barrier")
    A("s_mul_i32 s34, s36, 3")
    A("s_add_u32 s34, s34, s31")
    A("s_lshl_b32 s34, s34, 7")
    A("s_add_u32 s34, s34, %d" % (WS_FLAG + F_T2 * 128))
    A("v_mov_b32 v10, 1")
    A("v_mov_b32 v11, 0")
    A("v_mov_b32 v12, %d" % LTK)
    lsk = A.newlabel("Lt2sk")
    A("s_cmp_lg_u32 s29, 0")
    A("s_cbranch_scc1 %s" % lsk)
    A("s_mov_b64 exec, 1")
    A("buffer_atomic_add v10, v11, s[4:7], s34 offen sc0")
    A("s_waitcnt vmcnt(0)")
    A("ds_write_b32 v12, v10")
    A("s_waitcnt lgkmcnt(0)")
    A("s_mov_b64 exec, -1")
    A.label(lsk)
    A("s_barrier")
    A("ds_read_b32 v10, v12")
    A("s_waitcnt lgkmcnt(0)")
    A("v_readfirstlane_b32 s39, v10")
    lnext = A.newlabel("Lt2next")
    A("s_cmp_lg_u32 s39, 7")
    A("s_cbranch_scc1 %s" % lnext)
    if wait_base: wait_base(A)
    def ldp(hg, dst):
        A("s_add_u32 s33, s35, %d" % (hg * 12288))
        A("s_add_u32 s34, s35, %d" % (hg * 12288 + 4096))
        for k in range(6):
            A.vm("buffer_load_dwordx4 %s, v1, s[4:7], %s offen offset:%d sc1" % (reg(dst + 4 * k, 4), "s33" if k < 4 else "s34", (k % 4) * 1024))
        return A.vm_n
    tk = {}
    dsts = [R, R + 24, R + 48, R + 72, ACC, ACC + 24]
    for hg in range(6):
        tk[hg] = ldp(hg, dsts[hg])
    B = 16
    A("s_lshl_b32 s33, s36, 1")
    A("s_add_u32 s33, s33, s46")
    A("s_lshl_b32 s34, s33, 6")
    A("s_add_u32 s34, s34, %d" % WS_G)
    A.vm("buffer_load_dword %s, v4, s[4:7], s34 offen %s" % (v(B + 24), ldf))
    A("s_mul_i32 s38, s33, %d" % (16 * 1152))
    A("s_mul_i32 s33, s33, 6")
    A("s_add_u32 s33, s33, s47")
    A("s_mul_i32 s33, s33, 6144")
    A("s_add_u32 s33, s33, %d" % WS_BASE)
    A("s_add_u32 s34, s33, 4096")
    for k in range(6):
        A.vm("buffer_load_dwordx4 %s, v1, s[4:7], %s offen offset:%d %s" % (v(B + 4 * k, 4), "s33" if k < 4 else "s34", (k % 4) * 1024, ldf))
    def addv(src):
        for r in range(0, 24, 2):
            A("v_pk_add_f32 %s, %s, %s" % (v(R + r, 2), v(R + r, 2), v(src + r, 2)))
    A.wait_vm(tk[2])
    addv(R + 24); addv(R + 48)
    tk[6] = ldp(6, R + 24); tk[7] = ldp(7, R + 48)
    A.wait_vm(tk[5])
    addv(R + 72)
    for h2 in range(2):
        for r in range(24):
            A("v_accvgpr_read_b32 %s, %s" % (v(R + 72 + r), reg(ACC + 24 * h2 + r)))
        addv(R + 72)
    A("s_mul_i32 s34, s47, 192")
    A("s_add_u32 s38, s38, s34")
    A("s_waitcnt vmcnt(0)")
    addv(R + 24); addv(R + 48)
    for r in range(0, 24, 2):
        A("v_pk_fma_f32 %s, %s, %s, %s op_sel_hi:[1,0,1]" % (v(R + r, 2), v(R + r, 2), v(B + 24, 2), v(B + r, 2)))
    for r in range(12):
        A("v_cvt_pk_bf16_f32 %s, %s, %s" % (v(R + 72 + r), v(R + 2 * r), v(R + 2 * r + 1)))
    for p in range(3):
        A("buffer_store_dwordx4 %s, v3, s[16:19], s38 offen offset:%d" % (v(R + 72 + 4 * p, 4), p * 64))
    A("s_nop 1")
    A.label(lnext)
    A("s_add_u32 s36, s36, 8")
    A("s_cmp_lt_u32 s36, 64")
    A("s_cbranch_scc1 Lt2_seg")
```

```python
import sys
from asmlib import *
from layout import *
import gen_gemm1, gen_ffn2, gen_chain8, gen_t0
import gen_t2b as gen_t2
from gen_gemm1 import kernel_head, ws_srd, KD, wait_word, flag_add
NAME = "gated_mix__memory_aug_recurrent_mem_tr__dense_activation_gelu__prompt_kernel"

def build(chain_kw=None, force_float=False, prof=False):
    A = Asm()
    kernel_head(A, NAME)
    A("s_cmp_ge_u32 s2, 256")
    A("s_cbranch_scc1 Lexit")
    ws_srd(A)
    def rstamp(k):
        if not prof: return
        A("s_memrealtime s[100:101]")
        A("s_lshl_b32 s99, s2, 6")
        A("s_add_u32 s99, s99, %d" % (WS_PROF + 0x10000 + 4 * k))
        A("s_waitcnt lgkmcnt(0)")
        A("v_mov_b32 v62, s100")
        A("v_mov_b32 v63, 0")
        A("v_cmp_eq_u32 vcc, 0, v255")
        A("s_and_saveexec_b64 s[100:101], vcc")
        A("buffer_store_dword v62, v63, s[4:7], s99 offen")
        A("s_mov_b64 exec, -1")
    if prof:
        A("v_mov_b32 v255, v0")
    rstamp(0)
    A("s_getreg_b32 s80, hwreg(HW_REG_XCC_ID)")
    A("s_and_b32 s80, s80, 7")
    A("s_getreg_b32 s27, hwreg(HW_REG_XCC_ID)")
    A("s_and_b32 s27, s27, 15")
    A("s_cmp_lg_u32 s27, 0")
    A("s_cselect_b32 s27, 0x10000, 0")
    if force_float:
        A("s_lshr_b32 s80, s2, 5")
    A("s_mov_b32 s81, 0")
    A("v_mov_b32 v2, 0")
    A.label("Lclaim")
    A("s_lshl_b32 s31, s80, 2")
    A("s_cmp_eq_u32 s80, 0")
    A("s_cselect_b32 s31, %d, s31" % DBG_T0)
    A("v_mov_b32 v1, 1")
    A("v_cmp_eq_u32 vcc, 0, v0")
    A("s_and_saveexec_b64 s[32:33], vcc")
    A("s_cbranch_execz Lnoticket")
    A("buffer_atomic_add v1, v2, s[20:23], s31 offen sc0")
    A("s_waitcnt vmcnt(0)")
    A("ds_write_b32 v2, v1")
    A("s_waitcnt lgkmcnt(0)")
    A.label("Lnoticket")
    A("s_mov_b64 exec, s[32:33]")
    A("s_barrier")
    A("ds_read_b32 v1, v2")
    A("s_waitcnt lgkmcnt(0)")
    A("v_readfirstlane_b32 s28, v1")
    A("s_barrier")
    A("s_cmp_lt_u32 s28, 32")
    A("s_cbranch_scc1 Lclaimed")
    A("s_add_u32 s80, s80, 1")
    A("s_and_b32 s80, s80, 7")
    A("s_add_u32 s81, s81, 1")
    A("s_cmp_lt_u32 s81, 8")
    A("s_cbranch_scc1 Lclaim")
    A("s_branch Lexit")
    A.label("Lclaimed")
    A("s_cmp_eq_u32 s80, 0")
    A("s_cbranch_scc1 Lchain")
    A("s_sub_u32 s80, s80, 1")
    A("s_mov_b32 s81, s28")
    A("s_lshl_b32 s82, s80, 5")
    A("s_add_u32 s82, s82, s81")
    A("s_mul_i32 s31, s82, 293")
    A("s_lshr_b32 s31, s31, 11")
    assert all((x * 293) >> 11 == x // 7 for x in range(224))
    A("s_mul_i32 s32, s31, 7")
    A("s_sub_u32 s32, s82, s32")
    A("s_lshl_b32 s33, s31, 3")
    A("s_add_u32 s48, s33, s32")
    A("s_add_u32 s48, s48, 1")
    A("s_sub_u32 s32, s32, 3")
    A("s_lshl_b32 s86, s31, 1")
    A("s_and_b32 s33, s32, 1")
    A("s_add_u32 s86, s86, s33")
    A("s_lshr_b32 s33, s32, 1")
    A("s_lshl_b32 s33, s33, 6")
    A("s_add_u32 s86, s86, s33")
    A("s_cmp_lt_i32 s32, 0")
    A("s_cselect_b32 s86, 9999, s86")
    A("s_mul_i32 s33, s31, 3")
    A("s_add_u32 s33, s33, s32")
    A("s_add_u32 s33, s33, 3")
    A("s_lshl_b32 s34, s31, 2")
    A("s_add_u32 s34, s34, s32")
    A("s_add_u32 s83, s34, %d" % (384 + 96))
    A("s_add_u32 s35, s34, %d" % (256 - 48))
    A("s_cmp_ge_u32 s34, 48")
    A("s_cselect_b32 s83, s35, s83")
    A("s_add_u32 s35, s33, 384")
    A("s_lshr_b32 s84, s33, 1")
    A("s_add_u32 s84, s84, %d" % (256 + 80))
    A("s_bitcmp1_b32 s33, 0")
    A("s_cselect_b32 s84, 9999, s84")
    A("s_cmp_lt_i32 s32, 0")
    A("s_cselect_b32 s83, s35, s83")
    A("s_cselect_b32 s84, s84, 9999")
    A("s_mul_i32 s31, s80, 30")
    A("s_mul_i32 s32, s80, 24")
    A("s_add_u32 s32, s32, 24")
    A("s_cmp_lt_u32 s80, 4")
    A("s_cselect_b32 s31, s31, s32")
    A("s_cselect_b32 s32, 30, 24")
    A("s_sub_u32 s33, 31, s81")
    A("s_add_u32 s85, s31, s33")
    A("s_cmp_lt_u32 s33, s32")
    A("s_cselect_b32 s85, s85, 9999")
    rstamp(1)
    A("s_cmp_ge_u32 s86, 128")
    A("s_cbranch_scc1 Lw_g1")
    gen_t0.t0_task(A, 86)
    A("v_mov_b32 v253, %d" % DBG_ARR)
    A("s_mov_b32 s32, 0")
    A.label("Lt0fw")
    A("buffer_load_dword v252, v253, s[20:23], 0 offen sc1")
    A("s_add_u32 s32, s32, 1")
    A("s_cmp_gt_u32 s32, %d" % (1 << 20))
    A("s_cbranch_scc1 Lexit")
    A("s_waitcnt vmcnt(0)")
    A("v_readfirstlane_b32 s31, v252")
    A("s_and_b32 s31, s31, 0xffff")
    A("s_cmp_lt_u32 s31, 128")
    A("s_cbranch_scc1 Lt0fw")
    A("s_barrier")
    A("s_mov_b32 s78, %d" % (WS_FLAG + F_KV * 128))
    A("s_cmp_lg_u32 s29, 0")
    A("s_cbranch_scc1 Lw_g1")
    flag_add(A, 1)
    A.label("Lw_g1")
    rstamp(7)
    gen_gemm1.gemm1_setup(A)
    def nxt(A):
        A("s_mov_b32 s48, s83")
        A("s_mov_b32 s83, s84")
        A("s_mov_b32 s84, 9999")
    gen_gemm1.gemm1_body(A, nxt, "Lw_ffn2", stf="sc1", flags=True)
    A.label("Lw_ffn2")
    if prof: A("v_mov_b32 v255, v0")
    rstamp(2)
    A("s_cmp_ge_u32 s85, 192")
    A("s_cbranch_scc1 Lexit")
    A("s_barrier")
    def wait_h(A):
        A("s_lshr_b32 s35, s30, 2")
        A("s_lshl_b32 s35, s35, 2")
        A("s_add_u32 s35, s35, %d" % (WS_FLAG + F_H * 128))
        wait_word(A, "s35", 72)
    gen_ffn2.ffn2_task(A, 85, ldf="sc1", stf="sc1", wait_h=wait_h)
    A("s_waitcnt vmcnt(0)")
    A("s_barrier")
    A("s_lshl_b32 s78, s85, 7")
    A("s_add_u32 s78, s78, %d" % (WS_FLAG + F_BASE * 128))
    A("s_cmp_lg_u32 s29, 0")
    A("s_cbranch_scc1 Lw_t2")
    flag_add(A)
    A.label("Lw_t2")
    rstamp(3)
    def wait_inputs(A):
        A("s_mov_b32 s44, 0")
        for line, need in ((F_KV, 128), (F_Q, 64)):
            A("s_mov_b32 s35, %d" % (WS_FLAG + line * 128))
            wait_word(A, "s35", need, all8=True)
    def wait_chain(A):
        lok = A.newlabel("Lchok")
        A("s_cmp_gt_u32 s44, s36")
        A("s_cbranch_scc1 %s" % lok)
        A("s_lshl_b32 s33, s37, 7")
        A("s_add_u32 s33, s33, %d" % (WS_FLAG + F_CH * 128))
        A("s_add_u32 s34, s36, 1")
        wait_word(A, "s33", "s34")
        A("v_readfirstlane_b32 s44, v251")
        A.label(lok)
    def wait_base(A):
        A("s_lshr_b32 s33, s36, 1")
        A("s_mul_i32 s33, s33, 6")
        A("s_add_u32 s33, s33, s47")
        A("s_lshl_b32 s33, s33, 7")
        A("s_add_u32 s33, s33, %d" % (WS_FLAG + F_BASE * 128))
        wait_word(A, "s33", 1)
    gen_t2.t2_role(A, 85, wait_inputs=wait_inputs, wait_chain=wait_chain, wait_base=wait_base)
    if prof: A("v_mov_b32 v255, v0")
    rstamp(4)
    A.label("Lexit")
    A("s_endpgm")
    A.label("Lchain")
    gen_chain8.gen_chain(A, **(chain_kw or {}))
    hdr = open("gated_mix__memory_aug_recurrent_mem_tr__dense_activation_gelu__prompt.s.ref").read()
    hdr = hdr[:hdr.index("; Override launch")]
    return hdr + """; @launch kernel=%s grid=(256,1,1) block=(256,1,1) lds=163840
.amdgcn_target "amdgcn-amd-amdhsa--gfx950"
.text
""" % NAME + A.text() + '.section .rodata,"a"\n.p2align 6' + KD % NAME

if __name__ == "__main__":
    kw = dict(d1=4, d2=0, dg=5, X=("dbl",))
    open("all.s", "w").write(build(kw))
    open("all_ff.s", "w").write(build(kw, force_float=True))
    kw["tot"] = True
    kw["rt"] = True
    open("all_t.s", "w").write(build(kw, prof=True))
```

```python
from asmlib import *
from layout import *

X0 = 65536
L_KX = X0
L_VX = X0 + 8192
L_MEM = X0 + 16384
L_O = L_MEM
L_QK = L_MEM + 9216
L_SEL = L_QK + 4096
L_CST = L_SEL + 1024
L_DUMMY = L_CST + 256
assert L_DUMMY + 256 <= X0 + 32768
SPIN_MAX = 1 << 20

def gen_chain(A, prof=False, nsteps=64, tot=False, d1=0, d2=0, X=(), merged=True, rt=False, dg=4, touch=0):
    st_flags = "sc1"
    WS, WQK, WV, WO, DBG, M0S = 4, 8, 12, 16, 20, 24
    sH, sW, sStep, sT, sT2, sSpin = 28, 29, 30, 31, 32, 33
    sIn1R, sIn2W, sIn2R, sIn2Z, sKV, sPub, sUnit, sIn1Z, sC = 34, 35, 36, 37, 38, 39, 40, 41, 42
    sWarm, sPubV, sH2, sM0, sU2, sAll, sFl, sMK = 53, 63, 70, 71, 43, 95, 93, 87
    sKo, sVo = 86, 92
    sRz, sRb, sPubK = 44, 84, 47
    sOne = 88
    sSt = 48
    sAo = 54
    sOo = 64
    sW2k = 68
    sUo = 69
    sPT = 72
    vIdx, vLX, vLW, vLW2, vEw, vQKr, vOrH, vP1, vOb, vA = range(10)
    vP2 = 31
    sSlow = 94
    sfx = ['']
    VA1 = 12
    AR = [16, 20, 24]
    T = [28, 32, 36, 40]
    TB = 44
    VA0 = 60
    VA = [VA0, VA1]
    nstamp = [0]
    ncut = [0]
    def stamp():
        ncut[0] += 1
        if ("cut%d" % (ncut[0] - 1)) in X:
            A("s_add_u32 %s, %s, 1" % (s(sStep), s(sStep)))
            A("s_mov_b32 m0, %s" % s(sM0))
            A("s_nop 7")
            for gi in range(3):
                A("v_add_u32 %s, %s, %s" % (v([vA, 10, 11][gi]), s(sAo + 3 * gi), v(vLX)))
            A("v_lshlrev_b32 %s, 2, %s" % (v(VA0), v(vLX)))
            A("s_waitcnt lgkmcnt(0)")
            A("s_cmp_lt_u32 %s, 63" % s(sStep))
            A("s_cbranch_scc1 Lstep" + sfx[0])
            A("s_branch Lfin")
        if prof:
            A("s_memtime %s" % s(sPT + 2 * nstamp[0], 2))
            nstamp[0] += 1

    A.c("================= chain role =================")
    if tot:
        A("s_memtime s[98:99]")
    A("s_mov_b32 %s, s27" % s(sSlow))
    A("s_load_dwordx2 s[24:25], s[0:1], 8")
    A("s_load_dwordx4 s[44:47], s[0:1], 16")
    A("s_load_dwordx2 s[12:13], s[0:1], 32")
    A("s_load_dwordx2 s[16:17], s[0:1], 40")
    vLane = 27
    A("v_lshrrev_b32 v1, 6, v0")
    A("s_nop 0")
    A("v_readfirstlane_b32 %s, v1" % s(sW))
    A("v_and_b32 %s, 63, v0" % v(vLane))
    A("s_waitcnt lgkmcnt(0)")
    A("s_cmp_lt_u32 %s, 2" % s(sW))
    A("s_cselect_b32 s8, s44, s46")
    A("s_cselect_b32 s9, s45, s47")
    for b, n in ((WQK, 576 * 8192), (WV, 576 * 8192), (WO, 4096 * 1152), (M0S, 9216)):
        A("s_mov_b32 %s, %d" % (s(b + 2), n))
        A("s_mov_b32 %s, 0x00020000" % s(b + 3))
    L = v(vLane)
    t0, t1, t2, t3 = v(16), v(17), v(18), v(19)
    A("v_and_b32 %s, 15, %s" % (t0, L))
    A("v_lshrrev_b32 %s, 4, %s" % (t1, L))
    A("v_and_b32 %s, 8, %s" % (t2, L))
    A("v_mov_b32 %s, 0x4444" % v(vIdx))
    A("v_mov_b32 %s, 0xeeee" % t3)
    A("v_cmp_ne_u32 vcc, 0, %s" % t2)
    A("s_nop 1")
    A("v_cndmask_b32 %s, %s, %s, vcc" % (v(vIdx), v(vIdx), t3))
    A("v_lshlrev_b32 %s, 4, %s" % (t2, L))
    A("v_add_u32 %s, %d, %s" % (v(vLX), X0, t2))
    A("s_lshl_b32 %s, %s, 12" % (s(sT), s(sW)))
    A("v_add_u32 %s, %s, %s" % (v(vLW), s(sT), t2))
    A("v_add_u32 %s, 98304, %s" % (v(vLW2), v(vLW)))
    A("v_and_b32 %s, 7, %s" % (t2, L))
    A("v_lshl_add_u32 %s, %s, 3, %s" % (t2, t1, t2))
    A("v_lshlrev_b32 %s, 4, %s" % (t2, t2))
    A("v_add_u32 %s, %d, %s" % (v(vOb), L_O, t2))
    A("v_bfe_u32 %s, %s, 3, 1" % (t3, L))
    A("v_lshl_add_u32 %s, %s, 9, %s" % (v(vOrH), t3, v(vOb)))
    A("v_lshrrev_b32 %s, 1, %s" % (t2, t1))
    A("v_lshl_add_u32 %s, %s, 4, %s" % (t2, t2, t0))
    A("v_lshlrev_b32 %s, 4, %s" % (t2, t2))
    A("v_and_b32 %s, 1, %s" % (t3, t1))
    A("v_lshl_add_u32 %s, %s, 3, %s" % (t2, t3, t2))
    A("s_lshl_b32 %s, %s, 10" % (s(sT), s(sW)))
    A("s_add_u32 %s, %s, %d" % (s(sT), s(sT), X0))
    A("v_add_u32 %s, %s, %s" % (v(vEw), s(sT), t2))
    A("v_lshrrev_b32 %s, 2, %s" % (t2, t0))
    A("v_lshl_add_u32 %s, %s, 3, %s" % (t2, t1, t2))
    A("v_lshlrev_b32 %s, 4, %s" % (t2, t2))
    A("v_and_b32 %s, 1, %s" % (t3, L))
    A("v_lshl_add_u32 %s, %s, 3, %s" % (t2, t3, t2))
    A("v_add_u32 %s, %d, %s" % (v(vQKr), L_QK, t2))
    A("v_lshlrev_b32 %s, 12, %s" % (t2, t1))
    A("v_lshl_add_u32 %s, %s, 3, %s" % (t2, t0, t2))
    A("s_mul_i32 %s, %s, %d" % (s(sT), s(sW), 18 * 4096))
    A("s_lshl_b32 %s, %s, 7" % (s(sT2), s(sH)))
    A("s_add_u32 %s, %s, %s" % (s(sT), s(sT), s(sT2)))
    A("v_add_u32 %s, %s, %s" % (v(vP1), s(sT), t2))
    A("s_lshl_b32 %s, %s, 5" % (s(sUnit), s(sW)))
    A("s_add_u32 %s, %s, %s" % (s(sUnit), s(sUnit), s(sH)))
    A("v_and_b32 %s, 3, %s" % (t2, t0))
    A("v_lshlrev_b32 %s, 4, %s" % (t2, t2))
    A("v_lshrrev_b32 %s, 2, %s" % (t3, t0))
    A("v_lshl_add_u32 %s, %s, 7, %s" % (t2, t3, t2))
    A("v_and_b32 %s, 1, %s" % (t3, t1))
    A("v_lshl_add_u32 %s, %s, 3, %s" % (t2, t3, t2))
    A("v_lshrrev_b32 %s, 1, %s" % (t3, t1))
    A("v_lshl_add_u32 %s, %s, 2, %s" % (t2, t3, t2))
    A("s_lshr_b32 %s, %s, 1" % (s(sT), s(sUnit)))
    A("s_lshl_b32 %s, %s, 8" % (s(sT), s(sT)))
    A("s_and_b32 %s, %s, 1" % (s(sT2), s(sUnit)))
    A("s_lshl_b32 %s, %s, 6" % (s(sT2), s(sT2)))
    A("s_add_u32 %s, %s, %s" % (s(sT), s(sT), s(sT2)))
    A("s_lshl_b32 %s, %s, 12" % (s(sUo), s(sUnit)))
    A("s_sub_u32 %s, %s, %d" % (s(sUo), s(sUo), X0))
    A("s_cmp_lt_u32 %s, 72" % s(sUnit))
    A("s_cselect_b32 %s, %s, %d" % (s(sU2), s(sT), OOB))
    A("s_cselect_b32 %s, %s, %d" % (s(sUo), s(sUo), OOB))
    A("v_mov_b32 %s, %d" % (t3, OOB))
    A("v_cmp_gt_u32 vcc, 8, %s" % t0)
    A("s_nop 1")
    A("v_cndmask_b32 %s, %s, %s, vcc" % (v(vP2), t3, t2))
    A("s_mov_b32 %s, 0x3e0293ee" % s(sC))
    A("s_lshl_b32 %s, %s, 11" % (s(sW2k), s(sW)))
    for j in range(9):
        A("s_add_u32 %s, %s, %d" % (s(sT), s(sW), j // 3))
        A("s_sub_u32 %s, %s, 3" % (s(sT2), s(sT)))
        A("s_cmp_ge_u32 %s, 3" % s(sT))
        A("s_cselect_b32 %s, %s, %s" % (s(sT), s(sT2), s(sT)))
        A("s_mul_i32 %s, %s, 3072" % (s(sT), s(sT)))
        A("s_add_u32 %s, %s, %d" % (s(sAo + j), s(sT), (j % 3) * 1024))
    for j in range(4):
        A("s_add_u32 %s, %s, %d" % (s(sT), s(sW), j))
        A("s_and_b32 %s, %s, 3" % (s(sT), s(sT)))
        A("s_lshl_b32 %s, %s, 9" % (s(sOo + j), s(sT)))

    vOffQ, vOffO, vOffS, vTrH, vTrS, vTa, vOffV, vTrV = 20, 21, 22, 23, 25, 26, 28, 29
    vTrW = 48
    TMP = 32
    A("v_lshrrev_b32 %s, 3, %s" % (t2, L))
    A("v_and_b32 %s, 7, %s" % (t3, L))
    A("v_lshlrev_b32 %s, 13, %s" % (v(vOffQ), t2))
    A("v_lshl_add_u32 %s, %s, 4, %s" % (v(vOffQ), t3, v(vOffQ)))
    A("v_mul_u32_u24 %s, 1152, %s" % (v(vOffO), t2))
    A("v_lshl_add_u32 %s, %s, 4, %s" % (v(vOffO), t3, v(vOffO)))
    A("v_lshrrev_b32 %s, 1, %s" % (t2, L))
    A("v_mul_u32_u24 %s, 1152, %s" % (v(vOffS), t2))
    A("v_and_b32 %s, 1, %s" % (t2, L))
    A("v_lshl_add_u32 %s, %s, 4, %s" % (v(vOffS), t2, v(vOffS)))
    A("v_lshrrev_b32 %s, 2, %s" % (t2, L))
    A("v_and_b32 %s, 3, %s" % (t3, L))
    A("v_lshlrev_b32 %s, 13, %s" % (v(vOffV), t2))
    A("v_lshl_add_u32 %s, %s, 4, %s" % (v(vOffV), t3, v(vOffV)))
    A("s_lshl_b32 %s, %s, 12" % (s(sT), s(sW)))
    A("v_lshlrev_b32 %s, 3, %s" % (t3, t3))
    A("v_add_u32 %s, %s, %s" % (t3, s(sT), t3))
    A("v_lshlrev_b32 %s, 3, %s" % (v(vTa), t1))
    A("v_bfe_u32 %s, %s, 2, 1" % (t2, L))
    A("v_lshl_add_u32 %s, %s, 1, %s" % (v(vTa), t2, v(vTa)))
    A("v_bfe_u32 %s, %s, 3, 1" % (t2, L))
    A("v_add_u32 %s, %s, %s" % (v(vTa), t2, v(vTa)))
    A("v_lshl_add_u32 %s, %s, 7, %s" % (v(vTrH), v(vTa), t3))
    A("v_lshl_add_u32 %s, %s, 6, %s" % (v(vTrV), v(vTa), t3))
    A("v_and_b32 %s, 1, %s" % (t2, t1))
    A("v_lshlrev_b32 %s, 4, %s" % (v(vTa), t2))
    A("v_lshrrev_b32 %s, 1, %s" % (t2, t1))
    A("v_lshl_add_u32 %s, %s, 2, %s" % (v(vTa), t2, v(vTa)))
    A("v_bfe_u32 %s, %s, 2, 1" % (t2, L))
    A("v_add_u32 %s, %s, %s" % (v(vTa), t2, v(vTa)))
    A("v_bfe_u32 %s, %s, 3, 1" % (t2, L))
    for p in range(4):
        A("s_add_u32 %s, %s, %d" % (s(sT), s(sW), 2 * p))
        A("v_add_u32 v52, %s, %s" % (s(sT), t2))
        A("v_lshrrev_b32 v53, 2, v52")
        A("v_and_b32 v52, 3, v52")
        A("v_lshl_add_u32 %s, %s, 7, %s" % (v(vTrW + p), v(vTa), t3))
        A("v_lshl_add_u32 %s, v53, 14, %s" % (v(vTrW + p), v(vTrW + p)))
        A("v_lshl_add_u32 %s, v52, 5, %s" % (v(vTrW + p), v(vTrW + p)))
    A("v_lshl_add_u32 %s, %s, 5, %s" % (v(vTa), t2, v(vTa)))
    A("v_lshl_add_u32 %s, %s, 5, %s" % (v(vTrS), v(vTa), t3))
    A("v_lshlrev_b32 v55, 13, %s" % L)
    sQc, sVc, sOc, sLw = 44, 45, 46, 47
    A("s_lshl_b32 %s, %s, 8" % (s(sQc), s(sH)))
    A("s_lshl_b32 %s, %s, 6" % (s(sT), s(sW)))
    A("s_add_u32 %s, %s, %s" % (s(sVc), s(sQc), s(sT)))
    A("s_and_b32 %s, %s, 1" % (s(sT), s(sW)))
    A("s_lshl_b32 %s, %s, 7" % (s(sT), s(sT)))
    A("s_add_u32 %s, %s, %s" % (s(sQc), s(sQc), s(sT)))
    A("s_mul_i32 %s, %s, 147456" % (s(sOc), s(sH)))
    A("s_lshl_b32 %s, %s, 8" % (s(sT), s(sW)))
    A("s_add_u32 %s, %s, %s" % (s(sOc), s(sOc), s(sT)))
    A("s_lshl_b32 %s, %s, 12" % (s(sLw), s(sW)))

    res_qk = [0, 2, 4, 6, 8]
    res_wo = [(1, 0), (2, 1), (3, 1)]
    dfr = []
    for j in range(9):
        dfr.append(("qk", j, 0))
        if j not in res_qk:
            dfr.append(("qk", j, 1))
    for kk in range(9):
        dfr.append(("v", kk))
    for p in range(4):
        for kp in range(2):
            if (p, kp) not in res_wo:
                dfr.append(("wo", p, kp))
    dfr.append(("ws",))
    assert len(dfr) == 28
    regof = {}
    for i, d in enumerate(dfr):
        regof[d] = 256 + 16 * i if i < 16 else 64 + 16 * (i - 16)
    slotof = {("wo", 1, 0): 0, ("wo", 2, 1): 1, ("wo", 3, 1): 2}
    for j, sl in zip(res_qk, (3, 6, 7, 8, 9)):
        slotof[("qk", j, 1)] = sl
    def lds_frag_addr(d, q):
        sl = slotof[d]
        if sl < 4:
            return v(vLW), sl * 16384 + q * 1024
        return v(vLW2), (sl - 6) * 16384 + q * 1024
    def rdres(d, q):
        ar, off = lds_frag_addr(d, q)
        return A.ds("ds_read_b128 %s, %s offset:%d" % (v(TB + 4 * q, 4), ar, off))

    def load_weights(order, first):
        tick = {}
        touched = set()
        slots = {}
        free = [4, 5, 9, 8, 7, 6, 3]
        pending = list(order)
        def dma(vo, srd, lds):
            A("s_add_u32 m0, %s, %d" % (s(sLw), lds))
            A("s_nop 0")
            return A.vm("buffer_load_dwordx4 %s, %s, %s offen lds" % (v(vo), s(srd, 4), s(sT)))
        def alloc(c):
            if c[0] == "WO":
                for tr in ((3, 4, 5), (6, 7, 8)):
                    if all(x in free for x in tr):
                        return list(tr)
                return None
            if c[0] in ("V", "WS"):
                cand = [x for x in free if not (any(p[0] == "WO" for p in pending) and x != 9)]
                return cand[:1] if cand else None
            fin = slotof.get(("qk", c[1], 1))
            if fin is not None:
                if fin not in free: return None
                o = [x for x in free if x != fin]
                return [fin, o[0]] if o else None
            return free[:2] if len(free) >= 2 else None
        def issue(c):
            sl = slots[c]
            if c[0] == "QK":
                for i in range(8):
                    A("s_lshl_b32 %s, %s, 9" % (s(sT), s(sAo + c[1])))
                    A("s_add_u32 %s, %s, %s" % (s(sT), s(sT), s(sQc)))
                    A("s_add_u32 %s, %s, %d" % (s(sT), s(sT), 8 * i * 8192))
                    tick[c] = dma(vOffQ, WQK, sl[i // 4] * 16384 + (i % 4) * 1024)
            elif c[0] == "V":
                for i in range(4):
                    A("s_add_u32 %s, %s, %d" % (s(sT), s(sVc), (64 * c[1] + 16 * i) * 8192))
                    tick[c] = dma(vOffV, WV, sl[0] * 16384 + i * 1024)
            elif c[0] == "WO":
                for lc in range(3):
                    for i in range(4):
                        A("s_mul_i32 %s, %s, 72" % (s(sT), s(sOo + c[1])))
                        A("s_add_u32 %s, %s, %s" % (s(sT), s(sT), s(sOc)))
                        A("s_add_u32 %s, %s, %d" % (s(sT), s(sT), 8 * i * 1152 + 128 * lc))
                        tick[c] = dma(vOffO, WO, sl[lc] * 16384 + i * 1024)
            else:
                for i in range(4):
                    A("s_lshl_b32 %s, %s, 5" % (s(sT), s(sW)))
                    A("s_add_u32 %s, %s, %s" % (s(sT), s(sT), s(sOc)))
                    A("s_add_u32 %s, %s, %d" % (s(sT), s(sT), (32 * i) * 1152 + 256))
                    tick[c] = dma(vOffS, WO, sl[0] * 16384 + i * 1024)
        def try_issue():
            while pending:
                sl = alloc(pending[0])
                if sl is None: break
                c = pending.pop(0)
                for x in sl: free.remove(x)
                slots[c] = sl
                issue(c)
                ahead = [x for x in pending if x[0] == "QK" and x not in touched][:1] if (c[0] != "WO" and touch) else []
                nq = sum(1 for x in pending if x in touched)
                if ahead and nq < touch:
                    x = ahead[0]; touched.add(x)
                    A("s_lshl_b32 %s, %s, 9" % (s(sT), s(sAo + x[1])))
                    A("s_add_u32 %s, %s, %s" % (s(sT), s(sT), s(sQc)))
                    A.vm("buffer_load_dword v54, v55, %s, %s offen" % (s(WQK, 4), s(sT)))
        try_issue()
        first()
        init_t = A.vm_n
        arrived = False
        for c in order:
            assert c in tick, c
            A.wait_vm(tick[c])
            if not arrived and tick[c] > init_t:
                arrived = True
                A("s_add_u32 %s, %s, 1" % (s(sT), s(sSlow)))
                A("v_mov_b32 v56, %s" % s(sT))
                A("v_mov_b32 v57, %d" % DBG_ARR)
                A("s_mov_b64 exec, 1")
                A.vm("buffer_atomic_add v56, v57, %s, 0 offen" % s(DBG, 4))
                A("s_mov_b64 exec, -1")
            sl = slots[c]
            post = []
            keep = []
            if c[0] == "QK":
                for half in range(2):
                    A("v_add_u32 %s, %d, %s" % (v(vTa), sl[half] * 16384, v(vTrH)))
                    for tt in range(4):
                        dst = regof.get(("qk", c[1], tt // 2), TMP) + 8 * (tt % 2)
                        for pp in range(2):
                            A("ds_read_b64_tr_b16 %s, %s offset:%d" % (reg(dst + 4 * half + 2 * pp, 2), v(vTa), 4 * pp * 128 + tt * 32))
                d = ("qk", c[1], 1)
                if d not in regof:
                    post = [(d, q, TMP + 4 * q) for q in range(4)]
                    keep = [slotof[d]]
            elif c[0] == "V":
                A("v_add_u32 %s, %d, %s" % (v(vTa), sl[0] * 16384, v(vTrV)))
                for f in range(2):
                    for p in range(4):
                        A("ds_read_b64_tr_b16 %s, %s offset:%d" % (reg(regof[("v", c[1])] + 8 * f + 2 * p, 2), v(vTa), (32 * (p // 2) + 4 * (p % 2)) * 64 + f * 32))
            elif c[0] == "WO":
                nt = 0
                for p in range(4):
                    d = ("wo", p, c[1] // 2)
                    if d in regof:
                        dst = regof[d] + 8 * (c[1] % 2)
                    else:
                        dst = TMP + 8 * nt; nt += 1
                        post += [(d, 2 * (c[1] % 2) + q, dst + 4 * q) for q in range(2)]
                    A("v_add_u32 %s, %d, %s" % (v(vTa), sl[0] * 16384, v(vTrW + p)))
                    for pp in range(4):
                        A("ds_read_b64_tr_b16 %s, %s offset:%d" % (reg(dst + 2 * pp, 2), v(vTa), (8 * (pp // 2) + 2 * (pp % 2)) * 128))
            else:
                A("v_add_u32 %s, %d, %s" % (v(vTa), sl[0] * 16384, v(vTrS)))
                for f in range(2):
                    for p in range(4):
                        A("ds_read_b64_tr_b16 %s, %s offset:%d" % (reg(regof[("ws",)] + 8 * f + 2 * p, 2), v(vTa), (64 * f + 8 * (p // 2) + 2 * (p % 2)) * 32))
            A("s_waitcnt lgkmcnt(0)")
            for d, q, r in post:
                ar, off = lds_frag_addr(d, q)
                A("ds_write_b128 %s, %s offset:%d" % (ar, v(r, 4), off))
            for x in sl:
                if x not in keep: free.append(x)
            free.sort(key=lambda x: [4, 5, 9, 8, 7, 6, 3].index(x))
            try_issue()
        assert not pending
    def init_block():
        for r in range(4):
            A("v_mov_b32 %s, -1" % v(56 + r))
        for slot in range(2):
            A("s_add_u32 %s, %s, %d" % (s(sT), s(sUo), WS_IN1 + slot * IN1_SLOT))
            for j in range(4):
                A.vm("buffer_store_dwordx4 v[56:59], %s, %s, %s offen offset:%d %s" % (v(vLX), s(WS, 4), s(sT), j * 1024, st_flags))
        for slot in range(4):
            A("s_add_u32 %s, %s, %d" % (s(sT), s(sU2), WS_IN2 + slot * IN2_SLOT))
            A.vm("buffer_store_dword v56, %s, %s, %s offen %s" % (v(vP2), s(WS, 4), s(sT), st_flags))
        for r in range(4):
            A("v_mov_b32 %s, 0" % v(60 + r))
        A("s_lshl_b32 %s, %s, 12" % (s(sT), s(sH)))
        A("s_lshl_b32 %s, %s, 10" % (s(sT2), s(sW)))
        A("s_add_u32 %s, %s, %s" % (s(sT), s(sT), s(sT2)))
        A("s_add_u32 %s, %s, %d" % (s(sT), s(sT), WS_FLAG - X0))
        A.vm("buffer_store_dwordx4 v[60:63], %s, %s, %s offen sc1" % (v(vLX), s(WS, 4), s(sT)))
    WOs = [("WO", p) for p in range(4)]
    Vs = [("V", k) for k in range(9)]
    QN = [("QK", j) for j in (1, 3, 5, 7)]
    QR = [("QK", j) for j in res_qk]
    lodd = A.newlabel("Lodd"); ldone = A.newlabel("Lwdone")
    A("s_bitcmp1_b32 %s, 0" % s(sW))
    A("s_cbranch_scc1 %s" % lodd)
    load_weights(WOs + [("WS",)] + Vs + QN + QR, init_block)
    A("s_branch %s" % ldone)
    A.label(lodd)
    load_weights(WOs + [("WS",)] + QN[:1] + Vs + QN[1:] + QR, init_block)
    A.label(ldone)
    A("s_waitcnt vmcnt(0) lgkmcnt(0)")
    A("s_barrier")

    c0 = 32
    A("v_and_b32 %s, 1, %s" % (t2, L))
    A("v_lshlrev_b32 %s, 4, %s" % (t2, t2))
    A("v_mov_b32 %s, 0x3f80" % t3)
    A("v_lshlrev_b32 %s, %s, %s" % (t3, t2, t3))
    A("v_lshrrev_b32 %s, 1, %s" % (t2, t0))
    for r in range(4):
        A("v_cmp_eq_u32 vcc, %d, %s" % (r, t2))
        A("s_nop 1")
        A("v_cndmask_b32 %s, 0, %s, vcc" % (v(c0 + r), t3))
    A("ds_write_b128 %s, %s offset:%d" % (v(vLX), v(c0, 4), L_SEL - X0))
    A("v_lshrrev_b32 %s, 2, %s" % (t2, v(vLX)))
    A("ds_write_b32 %s, %s offset:%d" % (t2, v(vP2), L_CST - X0 // 4 - 32768))
    A.lines.pop()
    A("v_add_u32 %s, %d, %s" % (t2, L_CST - X0 // 4, t2))
    A("ds_write_b32 %s, %s" % (t2, v(vP2)))
    A("s_mov_b32 %s, 0x3f803f80" % s(sOne))
    A("s_mov_b32 %s, 0x3f803f80" % s(sOne + 1))
    A("s_mov_b32 %s, 0x3f003f00" % s(sOne + 2))
    A("s_mov_b32 %s, 0x3f003f00" % s(sOne + 3))
    A("s_lshl_b32 %s, %s, 14" % (s(sKV), s(sH)))
    A("s_add_u32 %s, %s, %d" % (s(sKV), s(sKV), WS_KV - X0))
    A("s_lshl_b32 %s, %s, 12" % (s(sT), s(sW)))
    A("s_add_u32 %s, %s, %s" % (s(sKV), s(sKV), s(sT)))
    A("s_add_u32 %s, %s, %d" % (s(sMK), s(sT), L_KX))
    A("s_add_u32 %s, %s, %d" % (s(sM0), s(sAo), L_MEM))
    A("s_lshl_b32 %s, %s, 7" % (s(sFl), s(sH)))
    A("s_add_u32 %s, %s, %d" % (s(sFl), s(sFl), WS_FLAG + F_CH * 128))
    A("s_mov_b32 %s, 0" % s(sAll))
    A("s_lshl_b32 %s, %s, 12" % (s(sRb), s(sH)))
    A("s_lshl_b32 %s, %s, 10" % (s(sT), s(sW)))
    A("s_add_u32 %s, %s, %s" % (s(sRb), s(sRb), s(sT)))
    A("s_sub_u32 %s, %s, %d" % (s(sRb), s(sRb), X0))
    A("s_mov_b32 %s, %d" % (s(sRb + 1), OOB))
    A("s_cmp_lt_u32 %s, 8" % s(sH))
    A("s_cselect_b32 %s, %d, %s" % (s(sRb + 1), 64 * 4096, s(sRb + 1)))
    for k in range(3):
        A("s_mov_b32 %s, %d" % (s(sRz + k), OOB))
    A("s_mov_b32 %s, %d" % (s(sPubK), OOB))
    A("v_mov_b32 %s, 0" % v(VA0 + 1))
    A("v_and_b32 %s, 7, %s" % (v(30), L))
    A("v_mul_u32_u24 %s, 1152, %s" % (v(30), v(30)))
    A("v_lshl_add_u32 %s, %s, 5, %s" % (v(30), t1, v(30)))
    A("v_mov_b32 v28, 0x05040100")
    A("v_mov_b32 v29, 0x07060302")
    A("v_cmp_ne_u32 vcc, 0x4444, %s" % v(vIdx))
    A("s_lshr_b32 %s, %s, 3" % (s(sT), s(sAo)))
    A("v_cndmask_b32 v28, v28, v29, vcc")
    for j in range(3):
        for x in range(2):
            A("buffer_load_dwordx4 %s, %s, %s, %s offen offset:%d" % (v(36 + 8 * j + 4 * x, 4), v(30), s(M0S, 4), s(sT), j * 128 + x * 16))
    lp = A.newlabel("Lpinit")
    A("s_mov_b32 %s, 0" % s(sSpin))
    A("v_mov_b32 v33, %d" % DBG_ARR)
    A.label(lp)
    A("buffer_load_dword v32, v33, %s, 0 offen sc1" % s(DBG, 4))
    A("s_add_u32 %s, %s, 1" % (s(sSpin), s(sSpin)))
    A("s_cmp_gt_u32 %s, %d" % (s(sSpin), SPIN_MAX))
    A("s_cbranch_scc1 Lchain_exit")
    A("s_waitcnt vmcnt(0)")
    A("v_readfirstlane_b32 %s, v32" % s(sSlow))
    A("s_and_b32 %s, %s, 0xffff" % (s(sT), s(sSlow)))
    A("s_cmp_lt_u32 %s, 128" % s(sT))
    A("s_cbranch_scc1 %s" % lp)
    for j in range(3):
        for m_ in range(4):
            A("v_perm_b32 %s, %s, %s, v28" % (v(AR[j] + m_), v(36 + 8 * j + 2 * m_ + 1), v(36 + 8 * j + 2 * m_)))
            A("v_min_u32 %s, -2, %s" % (v(AR[j] + m_), v(AR[j] + m_)))
    A("v_add_u32 v32, %s, %s" % (s(sAo), v(vLX)))
    for j in range(3):
        A("ds_write_b128 v32, %s offset:%d" % (v(AR[j], 4), L_MEM - X0 + j * 1024))

    def kv_wait(r0):
        if not merged:
            return
        lw = A.newlabel("Lkvw")
        A("v_lshrrev_b32 %s, 2, %s" % (v(r0), v(vLX)))
        A("v_and_b32 %s, 31, %s" % (v(r0), v(r0)))
        A("s_mov_b32 %s, %d" % (s(sT2), WS_FLAG + F_KV * 128))
        A("s_mov_b32 %s, 0" % s(sSpin))
        A.label(lw)
        A("buffer_load_dword %s, %s, %s, %s offen sc1" % (v(r0 + 1), v(r0), s(WS, 4), s(sT2)))
        A("s_add_u32 %s, %s, 1" % (s(sSpin), s(sSpin)))
        A("s_cmp_gt_u32 %s, %d" % (s(sSpin), SPIN_MAX))
        A("s_cbranch_scc1 Lchain_exit")
        A("s_add_u32 %s, %s, 1" % (s(sT), s(sStep)))
        A("s_lshr_b32 %s, %s, 3" % (s(sT), s(sT)))
        A("s_min_u32 %s, %s, 7" % (s(sT), s(sT)))
        A("s_waitcnt vmcnt(0)")
        A("v_cmp_le_u32 vcc, 128, %s" % v(r0 + 1))
        A("s_bitcmp1_b32 vcc_lo, %s" % s(sT))
        A("s_cbranch_scc0 %s" % lw)
        A("s_cmp_eq_u64 vcc, exec")
        A("s_cselect_b32 %s, 1, 0" % s(sAll))
    def kv_dma(i):
        A.vm("buffer_load_dwordx4 %s, %s, %s offen offset:%d sc1 lds" % (v(vLX), s(WS, 4), s(sKV), i * 1024))
    A("s_mov_b32 %s, 0" % s(sStep))
    A("s_mov_b32 %s, %d" % (s(sIn1Z), OOB))
    A("s_mov_b32 %s, %d" % (s(sIn2Z), OOB))
    A("v_mov_b32 %s, 0" % v(vA))
    kv_wait(34)
    A("s_mov_b32 m0, %s" % s(sMK))
    A("s_nop 0")
    for i in range(4):
        kv_dma(i)
    G = [None, 10, 11]
    def zero(r, n=4):
        for k in range(0, n, 2):
            A("v_mov_b64 %s, 0" % v(r + k, 2))
    def pre_a(res=True):
        for q in range(4):
            if res: rdres(("qk", 0, 1), q)
        for gi in (1, 2):
            A("v_add_u32 %s, %s, %s" % (v(G[gi]), s(sAo + 3 * gi), v(vLX)))
    def pre_s():
        A("s_and_b32 %s, %s, 1" % (s(sT), s(sStep)))
        A("s_mul_i32 %s, %s, %d" % (s(sT), s(sT), IN1_SLOT))
        A("s_add_u32 %s, %s, %d" % (s(sSt), s(sT), WS_IN1))
        for p in range(1, 5):
            A("s_add_u32 %s, %s, %d" % (s(sSt + p), s(sSt), p * 16384))
        A("s_add_u32 %s, %s, %s" % (s(sIn1R), s(sSt), s(sUo)))
        A("s_and_b32 %s, %s, 3" % (s(sT), s(sStep)))
        A("s_lshl_b32 %s, %s, 14" % (s(sT), s(sT)))
        A("s_add_u32 %s, %s, %d" % (s(sIn2W), s(sT), WS_IN2))
        A("s_add_u32 %s, %s, %d" % (s(sKV), s(sKV), 32 * 16384))
        A("s_sub_u32 %s, %s, %d" % (s(sWarm), s(sKV), 3 * X0))
        A("s_lshl_b32 %s, %s, 5" % (s(sT), s(sStep)))
        A("s_add_u32 %s, %s, %s" % (s(sT), s(sT), s(sH)))
        A("s_lshl_b32 %s, %s, 13" % (s(sT), s(sT)))
        A("s_add_u32 %s, %s, %d" % (s(sPub), s(sT), WS_KVM - X0))
        A("s_lshl_b32 %s, %s, 10" % (s(sT2), s(sW)))
        A("s_add_u32 %s, %s, %s" % (s(sPubV), s(sPub), s(sT2)))
        A("s_add_u32 %s, %s, 2048" % (s(sPubV), s(sPubV)))
    def pre_f():
        A("s_and_b32 %s, %s, 3" % (s(sT2), s(sStep)))
        A("s_xor_b32 %s, %s, 1" % (s(sT2), s(sT2)))
        A("s_cmp_ge_u32 %s, 60" % s(sStep))
        A("s_cselect_b32 %s, 0, %s" % (s(sT2), s(sT2)))
        A("s_or_b32 %s, %s, %s" % (s(sT2), s(sT2), s(sW)))
    pre_a()
    pre_s()
    pre_f()
    zero(T[0], 16)
    zero(VA1)
    A("v_lshlrev_b32 %s, 2, %s" % (v(VA0), v(vLX)))
    A("s_mov_b32 m0, %d" % L_DUMMY)
    if tot:
        A("s_memtime s[96:97]")
    if rt:
        A("s_memrealtime s[100:101]")
    if "acc" in X:
        for k in range(74, 84): A("s_mov_b32 s%d, 0" % k)
        A("s_memtime s[72:73]")
        A("s_waitcnt lgkmcnt(0)")
        A("s_mov_b32 s74, s72")
    A("s_waitcnt vmcnt(0) lgkmcnt(0)")
    A("s_cmp_ge_u32 %s, 0x10000" % s(sSlow))
    A("s_cbranch_scc1 Lstep_s")

    def cutp(name):
        if name in X:
            A("s_add_u32 %s, %s, 1" % (s(sStep), s(sStep)))
            A("s_nop 7")
            for gi in range(3):
                A("v_add_u32 %s, %s, %s" % (v([vA, 10, 11][gi]), s(sAo + 3 * gi), v(vLX)))
            A("v_lshlrev_b32 %s, 2, %s" % (v(VA0), v(vLX)))
            A("s_mov_b32 m0, %s" % s(sM0))
            A("s_waitcnt lgkmcnt(0)")
            A("s_cmp_lt_u32 %s, 63" % s(sStep))
            A("s_cbranch_scc1 Lstep" + sfx[0])
            A("s_branch Lfin")
    acc_on = "acc" in X
    def tick(k):
        if not acc_on: return
        if "abs" in X:
            A("s_memtime s[72:73]")
            A("s_cmp_eq_u32 %s, %d" % (s(sStep), 40 if k == 0 else 41))
            A("s_waitcnt lgkmcnt(0)")
            A("s_cselect_b32 s%d, s72, s%d" % (76 + k, 76 + k))
            return
        A("s_memtime s[72:73]")
        A("s_waitcnt lgkmcnt(0)")
        A("s_sub_u32 s75, s72, s74")
        A("s_add_u32 s%d, s%d, s75" % (76 + k, 76 + k))
        A("s_mov_b32 s74, s72")
    def smf(acc, areg, breg):
        A("v_smfmac_f32_16x16x64_bf16 %s, %s, %s, %s" % (v(acc, 4), v(areg, 4), reg(breg, 8), v(vIdx)))
    def mf(acc, a, b, first):
        A("v_mfma_f32_16x16x32_bf16 %s, %s, %s, %s" % (v(acc, 4), v(a, 4), v(b, 4), "0" if first else v(acc, 4)))
    def mf16(acc, a, b, first):
        A("v_mfma_f32_16x16x16_bf16 %s, %s, %s, %s" % (v(acc, 4), v(a, 2), v(b, 2), "0" if first else v(acc, 4)))
    def cv(dst, base):
        A("v_cvt_pk_bf16_f32 %s, %s, %s" % (v(dst), v(base), v(base + 1)))
        A("v_cvt_pk_bf16_f32 %s, %s, %s" % (v(dst + 1), v(base + 2), v(base + 3)))

    def loop(sf, st_flags):
        sfx[0] = sf
        A(".p2align 6")
        A.label("Lstep" + sf)
        A.ds_n = 100; A.vm_n = 100
        nstamp[0] = 0; ncut[0] = 0
        stamp()
        tick(3)
        if acc_on:
            A("s_add_u32 s81, s81, %s" % s(sSpin))
        atk = {0: 0, 1: 0, 2: 0}
        def rdA(i):
            if i < 9:
                atk[i] = A.ds("ds_read_b128 %s, %s offset:%d" % (v(AR[i % 3], 4), v(G[i // 3]), L_MEM - X0 + (i % 3) * 1024))
            else:
                atk[i] = A.ds("ds_read_b128 %s, %s offset:%d" % (v(AR[i % 3], 4), v(vLX), L_MEM - X0 + (i - 9) * 1024))
        if "hoponly" in X:
            A("s_cmp_eq_u32 %s, %d" % (s(sStep), nsteps - 1))
            A("s_cbranch_scc1 Lfin")
            A("s_barrier")
            A("buffer_store_dword %s, %s, %s, %s offen %s" % (v(VA1), v(vA), s(WS, 4), s(sIn2Z), st_flags))
            for j in range(3):
                A("buffer_store_dwordx4 %s, %s, %s, %s offen %s" % (v(VA1, 4), v(vLX), s(WS, 4), s(sRz + j), st_flags))
            A("v_bfe_u32 %s, %s, 9, 1" % (v(vA), v(vLX)))
            A("v_mul_u32_u24 %s, 8188, %s" % (v(vA), v(vA)))
            A("v_sub_u32 %s, %s, %s" % (v(vA), v(vP1), v(vA)))
            A("s_waitcnt vmcnt(0)")
            for _ in range(16): A("s_nop 15")
            A("s_barrier")
            for p_ in range(4):
                A("buffer_store_dwordx2 %s, %s, %s, %s offen %s" % (v(T[0], 2), v(vP1), s(WS, 4), s(sSt + p_), st_flags))
                if "spread" in X: A("s_nop 11")
            A("buffer_store_dword %s, %s, %s, %s offen %s" % (v(T[0]), v(vA), s(WS, 4), s(sSt + 4), st_flags))
            A("s_branch Lhops" + sf)
        tbt = 0
        lflag = A.newlabel("Lflag"); lflagr = A.newlabel("Lflagr")
        A("s_cmp_eq_u32 %s, 0" % s(sT2))
        for j in range(9):
            need = atk[j]
            if j in res_qk:
                need = max(need, tbt)
            if need:
                A.wait_ds(need)
            b0 = regof[("qk", j, 0)]
            b1 = TB if j in res_qk else regof[("qk", j, 1)]
            nxt = ("qk", j + 2, 1) if (j in res_qk and j + 2 in res_qk) else None
            smf(T[2], AR[j % 3], b1)
            if nxt: rdres(nxt, 0); rdres(nxt, 1)
            smf(T[3], AR[j % 3], b1 + 8)
            if nxt: rdres(nxt, 2); tbt = rdres(nxt, 3)
            smf(T[0], AR[j % 3], b0)
            smf(T[1], AR[j % 3], b0 + 8)
            if j == 1:
                A("s_barrier")
                rdA(3)
            if j >= 1:
                rdA(j + 3)
            if j == 1:
                A("buffer_store_dwordx2 %s, %s, %s, %s offen sc1" % (v(VA0 + 2, 2), v(VA0 + 1), s(WS, 4), s(sPubK)))
            if j == 2 and "nowarm" not in X:
                A("buffer_load_dword %s, %s, %s offen sc1 lds" % (v(VA0), s(WS, 4), s(sWarm)))
                A("s_cbranch_scc1 %s" % lflag)
                A.label(lflagr)
            if j == 3:
                zero(VA0)
                A("buffer_store_dword %s, %s, %s, %s offen %s" % (v(VA1), v(vA), s(WS, 4), s(sIn2Z), st_flags))
            if 4 <= j <= 6:
                A("buffer_store_dwordx4 %s, %s, %s, %s offen %s" % (v(VA1, 4), v(vLX), s(WS, 4), s(sRz + j - 4), st_flags))
            if j == 7: zero(VA1)
        stamp()
        tk = {}
        def rdkx(t, ks, dst):
            tk[("x", t, ks)] = A.ds("ds_read_b128 %s, %s offset:%d" % (v(dst, 4), v(vLX), L_KX - X0 + (t * 4 + ks) * 1024))
        def vmm(kk, t):
            i = 9 + kk
            if t == 0:
                A.wait_ds(atk[i])
            smf(VA[t], AR[i % 3], regof[("v", kk)] + 8 * t)
        def drain_pair(ta, tb_, dst):
            for r in range(4):
                A("v_permlane32_swap_b32 %s, %s" % (v(ta + r), v(tb_ + r)))
            A("v_pk_add_f32 %s, %s, %s" % (v(ta, 2), v(ta, 2), v(tb_, 2)))
            A("v_pk_add_f32 %s, %s, %s" % (v(ta + 2, 2), v(ta + 2, 2), v(tb_ + 2, 2)))
            cv(dst, ta)
        rdkx(0, 0, TB); rdkx(1, 0, TB + 4); rdkx(0, 1, TB + 8); rdkx(1, 1, TB + 12)
        cutp("ca")
        drain_pair(T[2], T[3], T[3])
        cutp("cb")
        A.ds("ds_write_b64 %s, %s offset:%d" % (v(vEw), v(T[3], 2), L_QK - X0 + 512))
        drain_pair(T[0], T[1], T[1])
        wq = A.ds("ds_write_b64 %s, %s offset:%d" % (v(vEw), v(T[1], 2), L_QK - X0))
        cutp("cc")
        vmm(0, 0)
        rdkx(0, 2, T[0])
        vmm(0, 1)
        vmm(1, 0)
        vmm(1, 1)
        cutp("cd")
        A("s_cmp_eq_u32 %s, %d" % (s(sStep), nsteps - 1))
        A.wait_ds(wq)
        A("s_barrier")
        stamp()
        A("s_cbranch_scc1 Llast" + sf)
        last_state = (A.ds_n, dict(atk))
        SX0, SX1, SM = T[1], T[3], T[0]
        QF = [T[2], AR[0], AR[1], AR[2]]
        def rdq(ks):
            for x in range(2):
                tk[("q", ks)] = A.ds("ds_read_b64_tr_b16 %s, %s offset:%d" % (v(QF[ks] + 2 * x, 2), v(vQKr), ks * 512 + x * 64))
        def rdkm(ks, dst):
            for x in range(2):
                tk[("m", ks)] = A.ds("ds_read_b64_tr_b16 %s, %s offset:%d" % (v(dst + 2 * x, 2), v(vQKr), 2048 + ks * 512 + x * 64))
        rdq(0); rdq(1)
        smf(VA[0], AR[2], regof[("v", 2)])
        rdq(2)
        smf(VA[1], AR[2], regof[("v", 2)] + 8)
        rdq(3)
        A("v_add_u32 %s, %s, %s" % (v(vA), s(sW2k), v(vLX)))
        A.wait_ds(tk[("q", 0)])
        mf(SX0, TB, QF[0], True);       rdkx(1, 2, TB)
        mf(SX1, TB + 4, QF[0], True);   rdkx(0, 3, TB + 4)
        A.wait_ds(tk[("q", 1)])
        mf(SX0, TB + 8, QF[1], False);  rdkx(1, 3, TB + 8)
        mf(SX1, TB + 12, QF[1], False); rdkm(0, TB + 12)
        A.wait_ds(tk[("x", 1, 2)])
        mf(SX0, T[0], QF[2], False)
        mf(SX1, TB, QF[2], False);      rdkm(1, TB)
        A.wait_ds(tk[("x", 1, 3)])
        mf(SX0, TB + 4, QF[3], False);  rdkm(2, TB + 4)
        mf(SX1, TB + 8, QF[3], False);  rdkm(3, TB + 8)
        VF = [TB + 12, T[2]]
        ONE = TB
        m, m2, m3 = 10, 11, vA
        A.wait_ds(tk[("m", 1)])
        mf(SM, TB + 12, QF[0], True)
        mf(SM, TB, QF[1], False)
        rdA(12)
        A.wait_ds(tk[("m", 3)])
        mf(SM, TB + 4, QF[2], False)
        rdA(13)
        A("v_max3_f32 %s, %s, %s, %s" % (v(m2), v(SX0), v(SX0 + 1), v(SX0 + 2)))
        mf(SM, TB + 8, QF[3], False)
        rdA(14)
        A("v_max3_f32 %s, %s, %s, %s" % (v(m2), v(m2), v(SX0 + 3), v(SX1)))
        stamp()
        A("v_max3_f32 %s, %s, %s, %s" % (v(m2), v(m2), v(SX1 + 1), v(SX1 + 2)))
        for t in range(2):
            tk[("vf", t)] = A.ds("ds_read_b128 %s, %s offset:%d" % (v(VF[t], 4), v(vA), L_VX - X0 + t * 1024))
        A("v_max_f32 %s, %s, %s" % (v(m2), v(m2), v(SX1 + 3)))
        vmm(3, 0)
        vmm(3, 1)
        rdA(15)
        A("v_max3_f32 %s, %s, %s, %s" % (v(m2), v(m2), v(SM), v(SM + 1)))
        A("v_max3_f32 %s, %s, %s, %s" % (v(m), v(m2), v(SM + 2), v(SM + 3)))
        A("v_max3_f32 %s, %s, %s, %s" % (v(m2), v(m2), v(SM + 2), v(SM + 3)))
        vmm(4, 0)
        A("v_permlane32_swap_b32 %s, %s" % (v(m), v(m2)))
        A("v_max_f32 %s, %s, %s" % (v(m3), v(m), v(m2)))
        A("v_max_f32 %s, %s, %s" % (v(m2), v(m), v(m2)))
        vmm(4, 1)
        rdA(16)
        A("v_permlane16_swap_b32 %s, %s" % (v(m3), v(m2)))
        A("v_max_f32 %s, %s, %s" % (v(m), v(m3), v(m2)))
        A("v_mul_f32 %s, %s, %s" % (v(m), s(sC), v(m)))
        PX, PM = TB + 4, TB + 8
        cutp("ce")
        def fm(base):
            for r in (0, 2):
                A("v_pk_fma_f32 %s, %s, %s, %s op_sel_hi:[1,0,0] neg_lo:[0,0,1] neg_hi:[0,0,1]" % (v(base + r, 2), v(base + r, 2), s(sC, 2), v(m, 2)))
        def ex(r):
            A("v_exp_f32 %s, %s" % (v(r), v(r)))
        fm(SX0); fm(SX1); fm(SM)
        ex(SX0)
        vmm(5, 0)
        ex(SX0 + 1)
        vmm(5, 1)
        rdA(17)
        ex(SX0 + 2)
        vmm(6, 0)
        ex(SX0 + 3)
        vmm(6, 1)
        ex(SX1)
        vmm(7, 0)
        ex(SX1 + 1)
        vmm(7, 1)
        ex(SX1 + 2)
        vmm(8, 0)
        ex(SX1 + 3)
        vmm(8, 1)
        cutp("cf")
        cv(PX, SX0)
        cv(PX + 2, SX1)
        ex(SM)
        ex(SM + 1)
        LS = AR[0]
        VH = AR[1]
        OT = [T[1], T[3]]
        mf(OT[0], VF[0], PX, True)
        ex(SM + 2)
        mf(OT[1], VF[1], PX, True)
        ex(SM + 3)
        A("v_mov_b64 %s, %s" % (v(ONE, 2), s(sOne, 2)))
        A("v_mov_b64 %s, %s" % (v(ONE + 2, 2), s(sOne + 2, 2)))
        cv(VH, VA0)
        mf16(LS, ONE, PX, True)
        cv(PM, SM)
        mf16(LS, ONE, PX + 2, False)
        cv(VH + 2, VA1)
        mf16(LS, ONE + 2, PM, False)
        cutp("cg")
        OA = [VA0, VA1, T[0], AR[2]]
        OS = T[2]
        zero(OA[0])
        mf16(OT[0], VH, PM, False)
        zero(OA[1])
        mf16(OT[1], VH + 2, PM, False)
        zero(OA[2])
        if "nopubv" not in X: A.vm("buffer_store_dwordx4 %s, %s, %s, %s offen sc1" % (v(VH, 4), v(vLX), s(WS, 4), s(sPubV)))
        A("v_rcp_f32 %s, %s" % (v(LS), v(LS)))
        zero(OA[3])
        A("v_add_u32 %s, %s, %s" % (v(vA), s(sOo), v(vOb)))
        OF = [AR[1], T[1], T[3], AR[0]]
        OF0 = OF[0]
        for t in range(2):
            for r in (0, 2):
                A("v_pk_mul_f32 %s, %s, %s op_sel_hi:[1,0]" % (v(OT[t] + r, 2), v(OT[t] + r, 2), v(LS, 2)))
        cv(OF0, OT[0])
        cv(OF0 + 2, OT[1])
        wo_ = A.ds("ds_write_b128 %s, %s" % (v(vA), v(OF0, 4)))
        cutp("ch")
        R1, R2, R3 = ("wo", 1, 0), ("wo", 2, 1), ("wo", 3, 1)
        rt = {}
        def bfrag(p, pos):
            d = ("wo", p, pos // 2)
            if d in regof:
                return regof[d] + 8 * (pos % 2)
            A.wait_ds(rt[(d, pos % 2)])
            return TB + 8 * (pos % 2)
        rdres(R1, 0); rt[(R1, 0)] = rdres(R1, 1)
        smf(OA[0], OF0, bfrag(0, 0))
        rdres(R1, 2)
        A("v_add_u32 %s, %s, %s" % (v(10), s(sOo + 1), v(vOb)))
        smf(OA[2], OF0, bfrag(2, 0))
        rt[(R1, 1)] = rdres(R1, 3)
        A("v_add_u32 %s, %s, %s" % (v(11), s(sOo + 2), v(vOb)))
        smf(OA[3], OF0, bfrag(3, 0))
        A("v_add_u32 %s, %s, %s" % (v(vA), s(sOo + 3), v(vOb)))
        A("s_mov_b32 m0, %s" % s(sMK))
        smf(OA[1], OF0, bfrag(1, 0))
        A("s_barrier")
        stamp()
        ot = {}
        ot[1] = A.ds("ds_read_b128 %s, %s" % (v(OF[1], 4), v(10)))
        ot[2] = A.ds("ds_read_b128 %s, %s" % (v(OF[2], 4), v(11)))
        ot[3] = A.ds("ds_read_b128 %s, %s" % (v(OF[3], 4), v(vA)))
        h0 = A.ds("ds_read_b128 %s, %s" % (v(OF0, 4), v(vOrH)))
        rdres(R2, 0); rt[(R2, 0)] = rdres(R2, 1)
        dma_on = "nodma" not in X
        if dma_on: kv_dma(0); kv_dma(1)
        def ostore(acc, p):
            cv(acc, acc)
            A.vm("buffer_store_dwordx2 %s, %s, %s, %s offen %s" % (v(acc, 2), v(vP1), s(WS, 4), s(sSt + p), st_flags))
        A.wait_ds(ot[1])
        smf(OA[0], OF[1], bfrag(0, 1))
        A("v_mov_b64 %s, 0" % v(OS, 2))
        A.wait_ds(ot[2])
        smf(OA[0], OF[2], bfrag(0, 2))
        A("v_mov_b64 %s, 0" % v(OS + 2, 2))
        A.wait_ds(ot[3])
        smf(OA[0], OF[3], bfrag(0, 3))
        A("v_bfe_u32 %s, %s, 9, 1" % (v(vA), v(vLX)))
        smf(OA[1], OF[1], TB + 8)
        rdres(R2, 2); rt[(R2, 1)] = rdres(R2, 3)
        A("v_mul_u32_u24 %s, 8188, %s" % (v(vA), v(vA)))
        smf(OA[1], OF[2], bfrag(1, 2))
        if dma_on: kv_dma(2)
        A("v_sub_u32 %s, %s, %s" % (v(vA), v(vP1), v(vA)))
        smf(OA[1], OF[3], bfrag(1, 3))
        ostore(OA[0], 0)
        smf(OA[2], OF[1], bfrag(2, 1))
        smf(OA[3], OF[1], bfrag(3, 1))
        h1 = A.ds("ds_read_b128 %s, %s offset:1024" % (v(OF[1], 4), v(vOrH)))
        smf(OA[2], OF[2], bfrag(2, 2))
        rdres(R3, 0); rt[(R3, 0)] = rdres(R3, 1)
        ostore(OA[1], 1)
        smf(OA[2], OF[3], bfrag(2, 3))
        rdres(R3, 2); rt[(R3, 1)] = rdres(R3, 3)
        smf(OS, OF0, regof[("ws",)])
        if dma_on: kv_dma(3)
        A.wait_ds(h1)
        smf(OS, OF[1], regof[("ws",)] + 8)
        smf(OA[3], OF[2], bfrag(3, 2))
        ostore(OA[2], 2)
        smf(OA[3], OF[3], bfrag(3, 3))
        A("s_nop 1")
        A("v_permlane32_swap_b32 %s, %s" % (v(OS), v(OS + 2)))
        A("v_permlane32_swap_b32 %s, %s" % (v(OS + 1), v(OS + 3)))
        A("v_add_f32 %s, %s, %s" % (v(OS), v(OS), v(OS + 2)))
        A("v_add_f32 %s, %s, %s" % (v(OS + 1), v(OS + 1), v(OS + 3)))
        A("v_cvt_pk_bf16_f32 %s, %s, %s" % (v(OS), v(OS), v(OS + 1)))
        A("s_nop 0")
        ostore(OA[3], 3)
        A.vm("buffer_store_dword %s, %s, %s, %s offen %s" % (v(OS), v(vA), s(WS, 4), s(sSt + 4), st_flags))
        stamp()

        A.label("Lhops" + sf)
        tick(0)
        lhop2 = A.newlabel("Lhop2"); lw3 = A.newlabel("Lw3"); lnd = A.newlabel("Lnd")
        P = T[0]
        SEL = AR[0]
        D = AR[1]
        mx = AR[2]
        def pub_k():
            for j in range(2):
                A("ds_read_b128 %s, %s offset:%d" % (v(T[j], 4), v(vLX), L_QK + 2048 - X0 + j * 1024))
            A("s_waitcnt lgkmcnt(0)")
            for j in range(2):
                A("buffer_store_dwordx4 %s, %s, %s, %s offen offset:%d sc1" % (v(T[j], 4), v(vLX), s(WS, 4), s(sPub), j * 1024))
        A("ds_read_b128 %s, %s offset:%d" % (v(SEL, 4), v(vLX), L_SEL - X0))
        A("v_lshrrev_b32 %s, 2, %s" % (v(vA), v(vLX)))
        A("v_add_u32 %s, %d, %s" % (v(vA), L_CST - X0 // 4, v(vA)))
        A("ds_read_b32 %s, %s" % (v(vA), v(vA)))
        pre_a("dbl" not in X)
        A("s_mov_b32 %s, %s" % (s(sIn1Z), s(sIn1R)))
        A("s_add_u32 %s, %s, %s" % (s(sRz), s(sSt), s(sRb)))
        A("s_add_u32 %s, %s, %d" % (s(sRz + 1), s(sRz), 32 * 4096))
        A("s_add_u32 %s, %s, %s" % (s(sRz + 2), s(sRz), s(sRb + 1)))
        A("s_add_u32 %s, %s, %d" % (s(sPubK), s(sPub), X0 // 2))
        A("s_add_u32 %s, %s, %s" % (s(sH2), s(sIn2W), s(sU2)))
        A("s_xor_b32 %s, %s, %d" % (s(sIn2Z), s(sH2), 2 * IN2_SLOT))
        A("s_add_u32 %s, %s, %s" % (s(sIn2R), s(sIn2W), s(sAo)))
        A("s_sub_u32 %s, %s, %d" % (s(sIn2R), s(sIn2R), X0))
        A("s_add_u32 %s, %s, 1" % (s(sStep), s(sStep)))
        pre_s()
        A("v_mov_b64 %s, -1" % v(VA1, 2))
        A("v_mov_b64 %s, -1" % v(VA1 + 2, 2))
        A("s_mov_b32 m0, %s" % s(sM0))
        if "dbl" in X:
            A("s_cmp_ge_u32 %s, 72" % s(sUnit))
            A("s_cbranch_scc1 %s" % lhop2)
            A("s_mov_b32 %s, 0" % s(sSpin))
            def issue(Pr):
                for j in range(4):
                    A("buffer_load_dwordx4 %s, %s, %s, %s offen offset:%d sc1" % (v(Pr + 4 * j, 4), v(vLX), s(WS, 4), s(sIn1Z), j * 1024))
            def check(Pr):
                for j in range(4):
                    A("s_waitcnt vmcnt(%d)" % (7 - j))
                    mf(D, Pr + 4 * j, SEL, j == 0)
                    if j == 0:
                        A("v_max3_u32 %s, %s, %s, %s" % (v(mx), v(Pr), v(Pr + 1), v(Pr + 2)))
                        A("v_max_u32 %s, %s, %s" % (v(mx), v(mx), v(Pr + 3)))
                    else:
                        A("v_max3_u32 %s, %s, %s, %s" % (v(mx), v(mx), v(Pr + 4 * j), v(Pr + 4 * j + 1)))
                        A("v_max3_u32 %s, %s, %s, %s" % (v(mx), v(mx), v(Pr + 4 * j + 2), v(Pr + 4 * j + 3)))
                A("v_cmp_eq_u32 vcc, -1, %s" % v(mx))
            for _ in range(d1):
                A("s_nop 7")
            issue(P)
            for _ in range(dg):
                A("s_nop 7")
            A("s_waitcnt lgkmcnt(0)")
            lp1 = A.newlabel("Lp1"); lok = A.newlabel("Lp1ok")
            A.label(lp1)
            issue(TB)
            check(P)
            A("s_cbranch_vccz %s" % lok)
            issue(P)
            A("s_add_u32 %s, %s, 1" % (s(sSpin), s(sSpin)))
            A("s_cmp_gt_u32 %s, %d" % (s(sSpin), SPIN_MAX))
            A("s_cbranch_scc1 Lchain_exit")
            check(TB)
            A("s_cbranch_vccnz %s" % lp1)
            A.label(lok)
        else:
            A("s_cmp_ge_u32 %s, %d" % (s(sUnit), 0 if "nohop" in X else 72))
            A("s_cbranch_scc1 %s" % lhop2)
            A("s_mov_b32 %s, 0" % s(sSpin))
            for _ in range(d1):
                A("s_nop 7")
            A("s_waitcnt lgkmcnt(0)" + (" vmcnt(0)" if "wst" in X else ""))
            lp1 = A.newlabel("Lp1")
            A.label(lp1)
            for j in range(4):
                A("buffer_load_dwordx4 %s, %s, %s, %s offen offset:%d sc1" % (v(P + 4 * j, 4), v(vLX), s(WS, 4), s(sIn1Z), j * 1024))
            A("s_add_u32 %s, %s, 1" % (s(sSpin), s(sSpin)))
            A("s_cmp_gt_u32 %s, %d" % (s(sSpin), SPIN_MAX))
            A("s_cbranch_scc1 Lchain_exit")
            for j in range(4):
                A("s_waitcnt vmcnt(%d)" % (3 - j))
                mf(D, P + 4 * j, SEL, j == 0)
                if j == 0:
                    A("v_max3_u32 %s, %s, %s, %s" % (v(mx), v(P), v(P + 1), v(P + 2)))
                    A("v_max_u32 %s, %s, %s" % (v(mx), v(mx), v(P + 3)))
                else:
                    A("v_max3_u32 %s, %s, %s, %s" % (v(mx), v(mx), v(P + 4 * j), v(P + 4 * j + 1)))
                    A("v_max3_u32 %s, %s, %s, %s" % (v(mx), v(mx), v(P + 4 * j + 2), v(P + 4 * j + 3)))
            A("v_cmp_eq_u32 vcc, -1, %s" % v(mx))
            A("s_cbranch_vccnz %s" % lp1)
        A("s_nop 3")
        A("v_permlane32_swap_b32 %s, %s" % (v(D), v(D + 2)))
        A("v_permlane32_swap_b32 %s, %s" % (v(D + 1), v(D + 3)))
        A("v_pk_add_f32 %s, %s, %s" % (v(D, 2), v(D, 2), v(D + 2, 2)))
        A("v_cvt_pk_bf16_f32 %s, %s, %s" % (v(D), v(D), v(D + 1)))
        A("buffer_store_dword %s, %s, %s, %s offen %s" % (v(D), v(vA), s(WS, 4), s(sH2), st_flags))
        if prof:
            A("s_mov_b32 s86, %s" % s(sSpin))
        if acc_on:
            A("s_add_u32 s80, s80, %s" % s(sSpin))
        A.label(lhop2)
        tick(1)
        stamp()
        if "dbl" in X:
            A("s_waitcnt vmcnt(1)")
            for q in range(4):
                rdres(("qk", 0, 1), q)
        zero(T[0], 16)
        if merged:
            lkv = A.newlabel("Lkvok")
            A("s_add_u32 %s, %s, 1" % (s(sT), s(sStep)))
            A("s_and_b32 %s, %s, 7" % (s(sT), s(sT)))
            A("s_or_b32 %s, %s, %s" % (s(sT), s(sT), s(sAll)))
            A("s_cbranch_scc1 %s" % lkv)
            kv_wait(VA0)
            A.label(lkv)
        pre_f()
        A("v_lshrrev_b32 %s, 1, %s" % (v(VA0 + 1), v(vLX)))
        A("s_lshl_b32 %s, %s, 9" % (s(sT), s(sW)))
        A("v_add_u32 %s, %s, %s" % (v(VA0 + 1), s(sT), v(VA0 + 1)))
        A("ds_read_b64 %s, %s offset:%d" % (v(VA0 + 2, 2), v(VA0 + 1), L_QK + 2048 - X0 // 2))
        A("s_waitcnt lgkmcnt(0)")
        A("s_barrier")
        tick(2)
        if prof:
            A("s_lshl_b32 %s, %s, 2" % (s(sT), s(sH)))
            A("s_add_u32 %s, %s, %s" % (s(sT), s(sT), s(sW)))
            A("s_lshl_b32 %s, %s, 6" % (s(sT), s(sT)))
            A("s_add_u32 %s, %s, %s" % (s(sT), s(sT), s(sStep)))
            A("s_lshl_b32 %s, %s, 6" % (s(sT), s(sT)))
            A("s_add_u32 %s, %s, %d" % (s(sT), s(sT), WS_PROF))
            A("v_mov_b32 %s, 0" % v(AR[0] + 1))
            A("s_mov_b64 exec, 1")
            for k in range(nstamp[0]):
                A("v_mov_b32 %s, %s" % (v(AR[0]), s(sPT + 2 * k)))
                A("buffer_store_dword %s, %s, %s, %s offen offset:%d" % (v(AR[0]), v(AR[0] + 1), s(WS, 4), s(sT), 4 * k))
            A("v_mov_b32 %s, s86" % v(AR[0]))
            A("buffer_store_dword %s, %s, %s, %s offen offset:%d" % (v(AR[0]), v(AR[0] + 1), s(WS, 4), s(sT), 56))
            A("v_mov_b32 %s, s86" % v(AR[0]))
            A("buffer_store_dword %s, %s, %s, %s offen offset:%d" % (v(AR[0]), v(AR[0] + 1), s(WS, 4), s(sT), 60))
            A("s_mov_b64 exec, -1")
        else:
            for _ in range(d2):
                A("s_nop 7")
        if "nohop" in X:
            A("s_mov_b32 m0, %d" % L_DUMMY)
            A("s_branch Lstep" + sf)
        A("s_mov_b32 %s, 0" % s(sSpin))
        g0, c1, c2 = VA0, T[0], T[0] + 1
        Q = AR[0]
        A("v_add_u32 %s, %s, %s" % (v(g0), s(sAo), v(vLX)))
        lp2 = A.newlabel("Lp2")
        A.label(lp2)
        for j in range(3):
            A("buffer_load_dwordx4 %s, %s, %s offen offset:%d sc1 lds" % (v(vLX), s(WS, 4), s(sIn2R), j * 1024))
        A("s_add_u32 %s, %s, 1" % (s(sSpin), s(sSpin)))
        A("s_cmp_gt_u32 %s, %d" % (s(sSpin), SPIN_MAX))
        A("s_cbranch_scc1 Lchain_exit")
        for j in range(3):
            A("s_waitcnt vmcnt(%d)" % (2 - j))
            A("ds_read_b128 %s, %s offset:%d" % (v(AR[j], 4), v(g0), L_MEM - X0 + j * 1024))
        A("s_waitcnt lgkmcnt(2)")
        A("v_max3_u32 %s, %s, %s, %s" % (v(c1), v(Q), v(Q + 1), v(Q + 2)))
        A("s_waitcnt lgkmcnt(1)")
        A("v_max3_u32 %s, %s, %s, %s" % (v(c2), v(Q + 3), v(Q + 4), v(Q + 5)))
        A("v_max3_u32 %s, %s, %s, %s" % (v(c1), v(c1), v(Q + 6), v(Q + 7)))
        A("s_waitcnt lgkmcnt(0)")
        A("v_max3_u32 %s, %s, %s, %s" % (v(c2), v(c2), v(Q + 8), v(Q + 9)))
        A("v_max3_u32 %s, %s, %s, %s" % (v(c1), v(c1), v(Q + 10), v(Q + 11)))
        A("v_max_u32 %s, %s, %s" % (v(c1), v(c1), v(c2)))
        A("v_cmp_eq_u32 vcc, -1, %s" % v(c1))
        if prof:
            A("s_mov_b32 s86, %s" % s(sSpin))
        A("v_mov_b64 %s, 0" % v(c1, 2))
        A("s_cbranch_vccnz %s" % lp2)
        A("v_lshlrev_b32 %s, 2, %s" % (v(VA0), v(vLX)))
        A("s_mov_b32 m0, %d" % L_DUMMY)
        A("s_branch Lstep" + sf)

        A.label(lflag)
        A("s_sub_u32 %s, %s, 1" % (s(sT), s(sStep)))
        A("s_max_i32 %s, %s, 0" % (s(sT), s(sT)))
        A("v_mov_b32 %s, %s" % (v(VA0 + 2), s(sT)))
        A("v_mov_b32 %s, 0" % v(VA0 + 3))
        A("s_mov_b64 exec, 1")
        A("buffer_store_dword %s, %s, %s, %s offen sc1" % (v(VA0 + 2), v(VA0 + 3), s(WS, 4), s(sFl)))
        A("s_mov_b64 exec, -1")
        A("s_branch %s" % lflagr)
        A.label("Llast" + sf)
        A.ds_n, atk2 = last_state
        atk.clear(); atk.update(atk2)
        vmm(2, 0); vmm(2, 1)
        for kk in range(3, 9):
            rdA(9 + kk)
            vmm(kk, 0); vmm(kk, 1)
        A("s_nop 7")
        A("s_nop 1")
        cv(TB, VA0)
        cv(TB + 2, VA1)
        A("buffer_store_dwordx4 %s, %s, %s, %s offen sc1" % (v(TB, 4), v(vLX), s(WS, 4), s(sPubV)))
        A("s_cmp_lg_u32 %s, 3" % s(sW))
        A("s_cbranch_scc1 Lfin")
        pub_k()
        A("s_branch Lfin")
    loop("", "")
    loop("_s", "sc1")
    A.label("Lfin")
    if acc_on:
        A("s_lshl_b32 %s, %s, 2" % (s(sT), s(sH)))
        A("s_add_u32 %s, %s, %s" % (s(sT), s(sT), s(sW)))
        A("s_lshl_b32 %s, %s, 5" % (s(sT), s(sT)))
        A("s_add_u32 %s, %s, %d" % (s(sT), s(sT), WS_PROF))
        A("v_mov_b32 v11, 0")
        for k in range(6):
            A("v_mov_b32 v10, s%d" % (76 + k))
            A("buffer_store_dword v10, v11, %s, %s offen offset:%d" % (s(WS, 4), s(sT), 4 * k))
    A("s_waitcnt vmcnt(0)")
    A("s_barrier")
    A("s_cmp_lg_u32 %s, 0" % s(sW))
    A("s_cbranch_scc1 Lchain_exit")
    A("v_mov_b32 v10, %d" % nsteps)
    A("v_mov_b32 v11, 0")
    A("s_mov_b64 exec, 1")
    A("buffer_store_dword v10, v11, %s, %s offen sc1" % (s(WS, 4), s(sFl)))
    if tot:
        A("s_memtime s[92:93]")
        A("s_waitcnt lgkmcnt(0)")
        A("s_sub_u32 s92, s92, s96")
        A("v_mov_b32 v20, s92")
        A("s_lshl_b32 %s, %s, 3" % (s(sT), s(sH)))
        A("s_add_u32 %s, %s, %d" % (s(sT), s(sT), WS_PROF - 4096))
        A("s_sub_u32 s98, s96, s98")
        A("v_mov_b32 v21, s98")
        A("buffer_store_dwordx2 v[20:21], v11, %s, %s offen" % (s(WS, 4), s(sT)))
    if rt:
        A("s_memrealtime s[96:97]")
        A("s_lshl_b32 s99, s2, 6")
        A("s_add_u32 s99, s99, %d" % (WS_PROF + 0x10000))
        A("s_waitcnt lgkmcnt(0)")
        A("v_mov_b32 v22, s100")
        A("v_mov_b32 v23, s96")
        A("buffer_store_dwordx2 v[22:23], v11, %s, s99 offen offset:20" % s(WS, 4))
    A.label("Lchain_exit")
    A("s_endpgm")


def standalone(prof=False, slow=False, **kw):
    from gen_gemm1 import KD
    A = Asm()
    hdr = """; @launch kernel=chain_kernel grid=(256,1,1) block=(256,1,1) lds=163840
.amdgcn_target "amdgcn-amd-amdhsa--gfx950"
.text
.globl chain_kernel
.p2align 8
.type chain_kernel,@function
chain_kernel:
"""
    A("s_cmp_ge_u32 s2, 256")
    A("s_cbranch_scc1 Lchain_exit")
    A("s_load_dwordx4 s[20:23], s[0:1], 112")
    A("s_getreg_b32 s28, hwreg(HW_REG_XCC_ID)")
    A("s_and_b32 s28, s28, 15")
    if not slow:
        A("s_cmp_lg_u32 s28, 0")
        A("s_cbranch_scc1 Lchain_exit")
    A("s_cmp_lg_u32 s28, 0")
    A("s_cselect_b32 s27, 0x10000, 0")
    A("s_waitcnt lgkmcnt(0)")
    A("s_mov_b32 s4, s22")
    A("s_mov_b32 s5, s23")
    A("s_mov_b32 s6, %d" % WS_BYTES)
    A("s_mov_b32 s7, 0x00020000")
    A("s_mov_b32 s22, 256")
    A("s_mov_b32 s23, 0x00020000")
    A("v_mov_b32 v1, 1")
    A("v_mov_b32 v2, 0")
    A("v_cmp_eq_u32 vcc, 0, v0")
    A("s_and_saveexec_b64 s[30:31], vcc")
    A("s_cbranch_execz Lnoticket")
    A("buffer_atomic_add v1, v2, s[20:23], 0 offen offset:%d sc0" % DBG_T0)
    A("s_waitcnt vmcnt(0)")
    A("ds_write_b32 v2, v1")
    A("s_waitcnt lgkmcnt(0)")
    A.label("Lnoticket")
    A("s_mov_b64 exec, s[30:31]")
    A("s_barrier")
    A("ds_read_b32 v1, v2")
    A("s_waitcnt lgkmcnt(0)")
    A("v_readfirstlane_b32 s28, v1")
    A("s_barrier")
    A("s_cmp_ge_u32 s28, 32")
    A("s_cbranch_scc1 Lchain_exit")
    gen_chain(A, prof=prof, tot=True, merged=False, rt=True, **kw)
    return hdr + A.text() + '.section .rodata,"a"\n.p2align 6' + KD % "chain_kernel"

if __name__ == "__main__":
    import sys
    d1 = int(sys.argv[1]) if len(sys.argv) > 1 else 0
    d2 = int(sys.argv[2]) if len(sys.argv) > 2 else 0
    open("chain_p.s", "w").write(standalone(True, d1=d1, d2=d2))
    open("chain_np.s", "w").write(standalone(False, d1=d1, d2=d2))
    open("chain_slow.s", "w").write(standalone(False, slow=True))
    for i, X in enumerate(sys.argv[3:]):
        xs = X.split(",")
        dd = {k[:2]: int(k[2:]) for k in xs if k[:2] in ("d1", "d2")}
        open("chain_x%d.s" % i, "w").write(standalone(False, d1=dd.get("d1", d1), d2=dd.get("d2", d2), X=tuple(xs)))
```
